```python
import torch

def _softmax(x, axis=-1):
    return torch.softmax(x, dim=axis)

def _gelu(x):
    return torch.nn.functional.gelu(x, approximate='tanh')

def _silu(x):
    return torch.nn.functional.silu(x)

def _sigmoid(x):
    return torch.sigmoid(x)

def _layernorm(x, axis=-1, eps=1e-05):
    m = x.mean(dim=axis, keepdim=True)
    v = x.var(dim=axis, keepdim=True, unbiased=False)
    return (x - m) / torch.sqrt(v + eps)

def _scatter_add(tgt, idx, src, axis=0):
    return tgt.clone().index_add_(axis, idx, src)

def _segment_sum(src, seg, n):
    out = torch.zeros((n,) + src.shape[1:], dtype=src.dtype)
    return out.index_add_(0, seg, src)

def _pad(x, pw):
    flat = tuple((v for pair in reversed(pw) for v in pair))
    return torch.nn.functional.pad(x, flat)
kernel_name = 'adaLN_cond__ssm_conv_s4__mixer_s_mlp__prompt'

def setup_inputs():

    _w = lambda a: (lambda t: t.to(torch.bfloat16) if t.is_floating_point() else t)(torch.as_tensor(a))

    def _A_setup():
        B, L, D, N = (1, 2048, 448, 256)
        A_re = -(lambda _x: torch.exp(torch.as_tensor(_x)))((lambda *s: torch.randn(*s, dtype=torch.bfloat16) * 3.2)(D, N))
        A_im = torch.pi * (lambda *s: torch.randn(*s, dtype=torch.bfloat16) * 0.1)(D, N)
        B_re = (lambda *s: torch.randn(*s, dtype=torch.bfloat16) * 0.2)(D, N)
        B_im = (lambda *s: torch.randn(*s, dtype=torch.bfloat16) * 0.2)(D, N)
        C_re = (lambda *s: torch.randn(*s, dtype=torch.bfloat16) * 0.2)(D, N)
        C_im = (lambda *s: torch.randn(*s, dtype=torch.bfloat16) * 0.2)(D, N)
        log_dt = (lambda *s: torch.randn(*s, dtype=torch.bfloat16) * 0.1)(D) * 0.5 - 4.0
        Dskip = (lambda *s: torch.randn(*s, dtype=torch.bfloat16) * 0.1)(D)
        return {'u': _w((lambda *s: torch.randn(*s, dtype=torch.bfloat16) * 0.05)(B, L, D)), 'A_re': _w(A_re), 'A_im': _w(A_im), 'B_re': _w(B_re), 'B_im': _w(B_im), 'C_re': _w(C_re), 'C_im': _w(C_im), 'log_dt': _w(log_dt), 'Dskip': _w(Dskip)}
    _A_in = _A_setup()

    def _B_setup():
        B, S, D, F = (1, 2048, 448, 1792)
        return {'x': _w((lambda *s: torch.randn(*s, dtype=torch.bfloat16) * 0.05)(B, S, D)), 'w1': _w((lambda *s: torch.randn(*s, dtype=torch.bfloat16) * 3.2)(D, D) * D ** (-0.5)), 'w2': _w((lambda *s: torch.randn(*s, dtype=torch.bfloat16) * 3.2)(D, D) * D ** (-0.5)), 'w3': _w((lambda *s: torch.randn(*s, dtype=torch.bfloat16) * 3.2)(D, F) * D ** (-0.5)), 'w4': _w((lambda *s: torch.randn(*s, dtype=torch.bfloat16) * 3.2)(F, D) * F ** (-0.5))}
    _B_in = _B_setup()
    return {'A_u': _A_in['u'], 'A_A_re': _A_in['A_re'], 'A_A_im': _A_in['A_im'], 'A_B_re': _A_in['B_re'], 'A_B_im': _A_in['B_im'], 'A_C_re': _A_in['C_re'], 'A_C_im': _A_in['C_im'], 'A_log_dt': _A_in['log_dt'], 'A_Dskip': _A_in['Dskip'], 'B_x': _B_in['x'], 'B_w1': _B_in['w1'], 'B_w2': _B_in['w2'], 'B_w3': _B_in['w3'], 'B_w4': _B_in['w4'], 'c': _w((lambda *s: torch.randn(*s, dtype=torch.bfloat16) * 0.1)(1, 448) * 8.0), 'w_mod': _w((lambda *s: torch.randn(*s, dtype=torch.bfloat16) * 0.1)(448, 6 * 448) * 448 ** (-0.5) * 8.0)}

def reference(A_u, A_A_re, A_A_im, A_B_re, A_B_im, A_C_re, A_C_im, A_log_dt, A_Dskip, B_x, B_w1, B_w2, B_w3, B_w4, c, w_mod):

    def _A_ref(u, A_re, A_im, B_re, B_im, C_re, C_im, log_dt, Dskip):
        Bsz, L, D = u.shape
        dt = torch.exp(log_dt)[:, None]
        A = A_re + 1j * A_im
        Bc = B_re + 1j * B_im
        Cc = C_re + 1j * C_im
        logdA = dt * A
        dB = dt * Bc
        l = (lambda x, dt: x.to(dt))(torch.arange(L), A_re.dtype)
        P = torch.exp(logdA[:, :, None] * l[None, None, :])
        K = torch.einsum('dn,dnl,dn->dl', Cc, P, dB).real
        L2 = 2 * L
        Kp = _pad(K, ((0, 0), (0, L)))
        up = (lambda x, *d: x.permute(*d))(u, 0, 2, 1)
        up = _pad(up, ((0, 0), (0, 0), (0, L)))
        Kf = (lambda x, axes=(-2, -1): torch.fft.rfft2(x.float(), dim=axes))(Kp[:, None, :], axes=(-2, -1))
        Uf = (lambda x, axes=(-2, -1): torch.fft.rfft2(x.float(), dim=axes))(up[:, :, None, :], axes=(-2, -1))
        Yf = Uf * Kf[None, :, :, :]
        y = (lambda x, s, axes=(-2, -1): torch.fft.irfft2(x, s=s, dim=axes).to(torch.bfloat16))(Yf, (1, L2), axes=(-2, -1))[:, :, 0, :L]
        y = (lambda x, *d: x.permute(*d))(y, 0, 2, 1) + u * Dskip[None, None, :]
        return y

    def _B_ref(x, w1, w2, w3, w4):
        B, S, D = x.shape
        h = _gelu(_layernorm(x, axis=-1) @ w1)
        c = D // 4
        g0 = _pad(h[:, :, 0 * c:1 * c], ((0, 0), (1, 0), (0, 0)))[:, :S, :]
        g1 = _pad(h[:, :, 1 * c:2 * c], ((0, 0), (0, 1), (0, 0)))[:, 1:, :]
        g2 = _pad(h[:, :, 2 * c:3 * c], ((0, 0), (2, 0), (0, 0)))[:, :S, :]
        g3 = _pad(h[:, :, 3 * c:], ((0, 0), (0, 2), (0, 0)))[:, 2:, :]
        hs = torch.concatenate([g0, g1, g2, g3], axis=-1) @ w2
        x1 = x + hs
        h2 = _gelu(_layernorm(x1, axis=-1) @ w3) @ w4
        return x1 + h2
    x = A_u
    mod = (_silu(c) @ w_mod).reshape(c.shape[0], 6, 1, -1)
    sa, ca, ga, sb, cb, gb = (mod[:, 0].clone(), mod[:, 1].clone(), mod[:, 2].clone(), mod[:, 3].clone(), mod[:, 4].clone(), mod[:, 5].clone())
    h = _layernorm(x, axis=-1) * (1 + ca) + sa
    x = x + ga * _A_ref(h, A_A_re, A_A_im, A_B_re, A_B_im, A_C_re, A_C_im, A_log_dt, A_Dskip)
    h = _layernorm(x, axis=-1) * (1 + cb) + sb
    x = x + gb * _B_ref(h, B_w1, B_w2, B_w3, B_w4)
    return x
```

```python
import re

TRANS = ('v_exp_f32', 'v_log_f32', 'v_rcp_f32', 'v_rsq_f32', 'v_sqrt_f32', 'v_sin_f32', 'v_cos_f32',
         'v_rcp_iflag_f32', 'v_exp_f16', 'v_rcp_f16')
REG_RE = re.compile(r'(?<![\w.])([vsa])(\d+)(?![\w\[])|(?<![\w.])([vsa])\[(\d+):(\d+)\]|(?<![\w.])(vcc|exec|m0)(?:_lo|_hi)?(?![\w])')

def regs_of(op):
    out = set()
    for m in REG_RE.finditer(op):
        if m.group(1): out.add((m.group(1), int(m.group(2))))
        elif m.group(3):
            for i in range(int(m.group(4)), int(m.group(5)) + 1): out.add((m.group(3), i))
        else: out.add((m.group(6), 0))
    return out

def split_ops(s):
    ops, depth, cur = [], 0, ''
    for ch in s:
        if ch == '[': depth += 1
        if ch == ']': depth -= 1
        if ch == ',' and depth == 0: ops.append(cur.strip()); cur = ''
        else: cur += ch
    if cur.strip(): ops.append(cur.strip())
    return ops

class Ins:
    __slots__ = ('text', 'mn', 'cls', 'w', 'r', 'trans', 'dpp', 'passes', 'srcc', 'srcab', 'label', 'target', 'uncond', 'wide_store', 'ws', 'lanesel', 'permlane', 'rdlane', 'ldsdma', 'opsel')
    def __init__(self, text):
        self.text = text; self.label = None; self.target = None; self.uncond = False
        self.w = set(); self.r = set(); self.trans = False; self.dpp = False; self.passes = 0
        self.srcc = set(); self.srcab = set(); self.wide_store = set(); self.ws = 1
        self.lanesel = set(); self.permlane = False; self.rdlane = False; self.ldsdma = False; self.opsel = False
        t = text.split(';')[0].strip()
        if t.endswith(':'):
            self.cls = 'label'; self.label = t[:-1]; self.mn = ''; self.ws = 0; return
        if t.startswith('.') or not t:
            self.cls = 'dir'; self.mn = ''; self.ws = 0; return
        parts = t.split(None, 1)
        mn = self.mn = parts[0]
        rest = parts[1] if len(parts) > 1 else ''
        ops = split_ops(rest)
        opr = [regs_of(o) for o in ops]
        allr = set().union(*opr) if opr else set()
        if mn.startswith('v_mfma'):
            self.cls = 'mfma'
            self.w = opr[0]; self.srcab = opr[1] | opr[2]; self.srcc = opr[3]; self.r = self.srcab | self.srcc
            self.passes = 8 if '32x32' in mn else 4
            if '16x16x4_f32' in mn: self.passes = 8
            if '32x32x2_f32' in mn: self.passes = 16
        elif mn.startswith('v_'):
            self.cls = 'valu'
            base = mn.replace('_e32', '').replace('_e64', '').replace('_dpp', '').replace('_sdwa', '')
            self.trans = base in TRANS
            self.dpp = ('row_' in rest) or ('quad_perm' in rest) or ('wave_' in rest)
            self.opsel = ('sdwa' in mn) or ('dst_sel' in rest) or ('op_sel' in rest and 'pk_' not in mn) or base.startswith('v_fma_mix')
            if base in ('v_nop',):
                pass
            elif base.startswith(('v_add_co', 'v_sub_co', 'v_subrev_co', 'v_addc_co', 'v_subb_co', 'v_subbrev_co', 'v_div_scale', 'v_mad_u64', 'v_mad_i64')):
                self.w = opr[0] | opr[1]; self.r = set().union(*opr[2:])
            elif base.startswith(('v_permlane', 'v_swap')):
                self.w = opr[0] | opr[1]; self.r = opr[0] | opr[1]; self.permlane = base.startswith('v_permlane')
            else:
                self.w = opr[0]; self.r = set().union(*opr[1:]) if len(opr) > 1 else set()
                if base.startswith(('v_fmac', 'v_mac', 'v_pk_fmac', 'v_dot2c', 'v_dot4c', 'v_writelane')) or self.dpp or self.opsel:
                    self.r |= opr[0]
                if base.startswith('v_cmpx'): self.w |= {('exec', 0)}
                if base in ('v_readlane_b32', 'v_readfirstlane_b32'):
                    self.rdlane = True
                if base in ('v_readlane_b32', 'v_writelane_b32') and len(opr) > 2: self.lanesel = opr[2]
                if base == 'v_div_fmas_f32': self.r |= {('vcc', 0)}
        elif mn.startswith(('buffer_', 'global_', 'flat_', 'scratch_')):
            self.cls = 'vmem'
            islds = bool(re.search(r'\blds\b', rest)) or '_lds_' in mn
            self.ldsdma = islds
            if ('load' in mn and not islds) or ('atomic' in mn and 'sc0' in rest):
                self.w = opr[0]; self.r = set().union(*opr[1:])
                if 'd16' in mn or 'atomic' in mn: self.r |= opr[0]
            else:
                self.r = allr
                if 'store' in mn and re.search(r'x[34]\b', mn):
                    self.wide_store = opr[0] if mn.startswith('buffer_') else opr[1]
            if islds: self.r |= {('m0', 0)}
        elif mn.startswith('ds_'):
            self.cls = 'ds'
            if mn.startswith(('ds_read', 'ds_bpermute', 'ds_permute', 'ds_swizzle')) or '_rtn' in mn:
                self.w = opr[0]; self.r = set().union(*opr[1:])
                if 'd16' in mn: self.r |= opr[0]
            else:
                self.r = allr
        elif mn.startswith('s_'):
            self.cls = 'salu'
            if mn == 's_nop': self.ws = int(rest.strip(), 0) + 1
            elif mn.startswith('s_cbranch') or mn == 's_branch':
                self.target = rest.strip(); self.uncond = (mn == 's_branch')
            elif mn == 's_endpgm': self.uncond = True
            elif mn.startswith(('s_cmp', 's_waitcnt', 's_barrier', 's_setprio', 's_sleep', 's_bitcmp')):
                self.r = allr
            else:
                self.w = opr[0] if opr else set(); self.r = set().union(*opr[1:]) if len(opr) > 1 else set()
                if 'saveexec' in mn: self.w |= {('exec', 0)}
        else:
            raise ValueError('unknown instruction: ' + text)

def required(p, c):
    n = 0
    sg = lambda s: {x for x in s if x[0] in ('s', 'vcc')}
    vg = lambda s: {x for x in s if x[0] in ('v', 'a')}
    if p.cls == 'valu':
        pv = vg(p.w); ps = sg(p.w)
        if pv:
            if c.cls == 'valu':
                if c.dpp and (pv & c.r): n = max(n, 2)
                if c.rdlane and (pv & c.r): n = max(n, 1)
                if c.permlane and (pv & c.r): n = max(n, 2)
                if p.trans and not c.trans and (pv & c.r): n = max(n, 1)
                if p.opsel and (pv & (c.r | c.w)): n = max(n, 1)
            if c.cls == 'mfma' and (pv & c.r): n = max(n, 2)
            if p.mn.startswith('v_dot'):
                if c.mn == p.mn:
                    ops = split_ops(c.text.split(';')[0].strip().split(None, 1)[1])
                    if pv & (regs_of(ops[1]) | regs_of(ops[2])): n = max(n, 3)
                elif pv & (c.r | c.w): n = max(n, 3)
        if ps:
            if c.cls == 'valu':
                if ps & c.lanesel: n = max(n, 4)
                if ps & c.r: n = max(n, 4 if c.mn.startswith('v_div_fmas') else 2)
            if c.cls == 'mfma' and (ps & c.r): n = max(n, 2)
            if c.cls == 'vmem' and (ps & c.r): n = max(n, 5)
        if ('exec', 0) in p.w:
            if c.cls in ('valu', 'mfma'): n = max(n, 5)
    if p.cls == 'mfma':
        big = {2: 5, 4: 8, 8: 12, 16: 20}[p.passes]
        if c.cls == 'mfma':
            if p.w & c.srcab: n = max(n, big)
            if (p.w & c.srcc) and not (p.w == c.srcc and p.passes == c.passes): n = max(n, big - 2)
        elif c.cls in ('valu', 'vmem', 'ds'):
            if p.w & (c.r | c.w): n = max(n, big)
        if c.cls == 'valu' and (p.srcc & c.w): n = max(n, {2: 1, 4: 3, 8: 7, 16: 15}[p.passes])
    if p.wide_store:
        if p.wide_store & c.w: n = max(n, 2 if c.cls == 'valu' else 1)
    if p.cls == 'salu' and ('m0', 0) in p.w and ('m0', 0) in c.r and c.cls in ('vmem', 'ds'): n = max(n, 1)
    return n

def pad_hazards(lines):
    ins = [Ins(l) for l in lines]
    i = 0
    def build():
        labels = {x.label: k for k, x in enumerate(ins) if x.label}
        srcs = {}
        for k, x in enumerate(ins):
            if x.target is not None: srcs.setdefault(labels[x.target], []).append(k)
        return srcs
    srcs = build()
    def preds(k):
        out = []
        if k > 0 and not ins[k-1].uncond: out.append(k - 1)
        out += srcs.get(k, [])
        return out
    while i < len(ins):
        c = ins[i]
        if c.cls in ('label', 'dir') or c.mn == 's_nop':
            i += 1; continue
        need = 0
        stack = [(p, 0) for p in preds(i)]
        seen = {}
        while stack:
            j, dist = stack.pop()
            if dist >= 21 or seen.get(j, 99) <= dist: continue
            seen[j] = dist
            p = ins[j]
            if p.cls not in ('label', 'dir'):
                need = max(need, required(p, c) - dist)
            for q in preds(j): stack.append((q, dist + p.ws))
        if need > 0:
            nops = []
            while need > 0:
                m = min(need, 16); nops.append(Ins(f'    s_nop {m-1}')); need -= m
            ins[i:i] = nops
            srcs = build()
            i += len(nops)
        i += 1
    return [x.text for x in ins]

import os
STAMPS = int(os.environ.get('STAMPS', '0'))
STAMP_OFF = 60 << 20
class Asm:
    def __init__(self): self.lines = []; self.nst = 0
    def stamp(self, real=False):
        if not STAMPS: return
        i = self.nst; self.nst += 1
        assert i < 16
        self(f's_{"memrealtime" if real else "memtime"} s[{64+2*i}:{65+2*i}]')
        self('s_waitcnt lgkmcnt(0)')
    def stamp_dump(self, kidx, wsreg, vt=(250, 251)):
        if not STAMPS: return
        self.stamp(); self.stamp(real=True)
        a, b = vt
        self('s_mov_b64 exec, -1')
        self(f'v_lshrrev_b32 v{a}, 6, v0')
        self(f's_lshl_b32 s62, s2, 4')
        self(f'v_add_u32 v{a}, s62, v{a}')
        self(f'v_lshlrev_b32 v{a}, 6, v{a}')
        self(f's_add_u32 s62, s{wsreg}, {STAMP_OFF + kidx * (1 << 19)}')
        self(f's_addc_u32 s63, s{wsreg+1}, 0')
        for i in range(16):
            self(f'v_mov_b32 v{b}, s{64+2*i}' if i < self.nst else f'v_mov_b32 v{b}, 0')
            self(f'global_store_dword v{a}, v{b}, s[62:63] offset:{4*i}')
        self.nst = 0
    def __call__(self, s):
        for l in s.strip('\n').split('\n'):
            l = l.strip()
            if not l: continue
            self.lines.append(l if l.endswith(':') else '    ' + l)
    def label(self, l): self.lines.append(l + ':')
    def text(self): return '\n'.join(pad_hazards(self.lines))
```

```python
from asmlib import Asm
from layout import *

def gen_k2(G):
    f32, srd, rnd_bf16, unpack2, kernel = G.f32, G.srd, G.rnd_bf16, G.unpack2, G.kernel
    a = Asm()
    a('s_cmp_lt_u32 s2, 224')
    a('s_cbranch_scc1 K2_CONV')
    a('s_cmp_lt_u32 s2, 294')
    a('s_cbranch_scc1 K2_PACK')
    a('s_endpgm')
    a.label('K2_CONV')
    TCS = 34816; KB = 69632; RED = 17408
    osig = [0, 4, 8, 12, 2, 6, 10, 14]
    tbase = lambda sg: sg * 4352 + osig[sg] * 16
    a('s_load_dwordx2 s[4:5], s[0:1], 144')
    a('s_load_dwordx2 s[6:7], s[0:1], 64')
    a('s_lshl_b32 s3, s2, 3')
    a('s_lshl_b32 s16, s2, 2')
    a('v_lshrrev_b32 v1, 2, v0')
    a('v_mul_u32_u24 v1, 28672, v1')
    a('v_and_b32 v2, 3, v0')
    a('v_lshl_add_u32 v1, v2, 4, v1')
    a('s_lshl_b32 s17, s2, 7')
    a('v_add_u32 v1, s17, v1')
    a('s_lshl_b32 s17, s2, 13')
    a('v_lshl_add_u32 v2, v0, 4, s17')
    a('s_waitcnt lgkmcnt(0)')
    a(f's_add_u32 s18, s4, {XNT}'); a('s_addc_u32 s19, s5, 0')
    a(f's_add_u32 s20, s4, {KP}'); a('s_addc_u32 s21, s5, 0')
    a('global_load_dwordx4 v[8:11], v1, s[18:19]')
    a('global_load_dwordx4 v[12:15], v1, s[18:19] offset:64')
    a('global_load_dwordx4 v[16:19], v2, s[20:21]')
    a('v_add_u32 v2, 4096, v2')
    a('global_load_dwordx4 v[20:23], v2, s[20:21]')
    a(f's_add_u32 s22, s3, {MOD}');        a('s_load_dwordx2 s[8:9], s[4:5], s22')
    a(f's_add_u32 s22, s3, {MOD+1792}');   a('s_load_dwordx2 s[10:11], s[4:5], s22')
    a(f's_add_u32 s22, s3, {MOD+3584}');   a('s_load_dwordx2 s[12:13], s[4:5], s22')
    a(f's_add_u32 s22, s3, {KSC}');        a('s_load_dwordx2 s[14:15], s[4:5], s22')
    a('s_load_dword s16, s[6:7], s16')
    for r in range(4): a(f'v_mov_b32 v{24+r}, 0')
    a('v_and_b32 v3, 31, v0')
    a('v_lshlrev_b32 v3, 4, v3')
    a('v_lshrrev_b32 v4, 5, v0')
    a('v_mul_u32_u24 v4, 4608, v4')
    a('v_add_u32 v3, v3, v4')
    a(f'v_add_u32 v3, {KB}, v3')
    a('v_and_b32 v4, 7, v0')
    a('v_mul_u32_u24 v5, 4352, v4')
    a('v_and_b32 v6, 3, v4')
    a('v_lshl_add_u32 v5, v6, 6, v5')
    a('v_lshrrev_b32 v6, 2, v4')
    a('v_lshl_add_u32 v5, v6, 5, v5')
    a('v_bfe_u32 v6, v0, 3, 1')
    a(f'v_mul_u32_u24 v6, {TCS}, v6')
    a('v_add_u32 v5, v5, v6')
    a('v_cmp_gt_u32 vcc, 64, v0')
    a('s_and_saveexec_b64 s[24:25], vcc')
    a('ds_write_b128 v3, v[24:27]')
    a('v_cmp_gt_u32 vcc, 16, v0')
    a('s_and_b64 exec, exec, vcc')
    a('ds_write_b128 v5, v[24:27] offset:4096')
    a('ds_write_b128 v5, v[24:27] offset:4112')
    a('s_mov_b64 exec, s[24:25]')
    a('v_lshlrev_b32 v3, 4, v0')
    a('v_sub_u32 v4, 4080, v3')
    a('s_waitcnt lgkmcnt(0)')
    for c in range(2):
        b = 28 + 4*c
        a(f'v_add_f32 v{b}, 1.0, s{10+c}')
        rnd_bf16(a, b, b)
        a(f'v_mov_b32 v{b+1}, s{8+c}')
        a(f'v_mul_f32 v5, {f32(32.0)}, v{b}')
        a(f'v_add_f32 v5, |v5|, |v{b+1}|')
        a('v_frexp_exp_i32_f32 v5, v5')
        a('v_mov_b32 v6, 100')
        a('v_min_i32 v5, v5, v6')
        a('v_sub_u32 v6, 0, v6')
        a('v_max_i32 v5, v5, v6')
        a('v_sub_u32 v6, 15, v5')
        a(f'v_ldexp_f32 v{b+2}, 1.0, v6')
        a('v_add_u32 v6, -15, v5')
        a(f'v_mov_b32 v7, s{14+c}')
        a(f'v_ldexp_f32 v{b+3}, v7, v6')
    a(f'v_add_u32 v5, {KB+512}, v3')
    for c in range(2):
        b = 28 + 4*c
        a(f's_waitcnt vmcnt({3-c})')
        src = 8 + 4*c
        for k in range(4):
            unpack2(a, 40+2*k, 41+2*k, src + k)
            a(f'v_mul_f32 v{40+2*k}, v{40+2*k}, v{b}')
            a(f'v_mul_f32 v{41+2*k}, v{41+2*k}, v{b}')
            a(f'v_cvt_pk_bf16_f32 v{48+k}, v{40+2*k}, v{41+2*k}')
            unpack2(a, 40+2*k, 41+2*k, 48 + k)
            a(f'v_add_f32 v{40+2*k}, v{40+2*k}, v{b+1}')
            a(f'v_add_f32 v{41+2*k}, v{41+2*k}, v{b+1}')
            a(f'v_cvt_pk_bf16_f32 v{48+k}, v{40+2*k}, v{41+2*k}')
            unpack2(a, 40+2*k, 41+2*k, 48 + k)
            a(f'v_mul_f32 v{40+2*k}, v{40+2*k}, v{b+2}')
            a(f'v_mul_f32 v{41+2*k}, v{41+2*k}, v{b+2}')
        for k in range(4):
            a(f'v_cvt_pk_f16_f32 v{52+k}, v{47-2*k}, v{46-2*k}')
        a(f'ds_write_b128 v4, v[52:55] offset:{TCS*c}')
    a('s_waitcnt vmcnt(0)')
    a('ds_write_b128 v5, v[16:19]')
    a('ds_write_b128 v5, v[20:23] offset:4608')
    a('s_waitcnt lgkmcnt(0)')
    a('s_barrier')
    for c in range(2):
        a(f'ds_read_b128 v[{40+8*c}:{43+8*c}], v3 offset:{TCS*c}')
        a(f'ds_read_b128 v[{44+8*c}:{47+8*c}], v3 offset:{TCS*c+16}')
    a('v_and_b32 v8, 15, v0')
    a('v_bfe_u32 v9, v0, 4, 2')
    a('v_lshrrev_b32 v10, 6, v0')
    a('v_readfirstlane_b32 s26, v10')
    a('s_lshr_b32 s27, s26, 1')
    a('s_and_b32 s28, s26, 1')
    a('v_and_b32 v11, 7, v8')
    a('v_sub_u32 v11, 7, v11')
    a('v_mul_u32_u24 v12, 4352, v11')
    a('v_and_b32 v13, 3, v11')
    a('v_lshl_add_u32 v12, v13, 6, v12')
    a('v_lshrrev_b32 v13, 2, v11')
    a('v_lshl_add_u32 v12, v13, 5, v12')
    a('v_and_b32 v13, 1, v9')
    a('v_lshrrev_b32 v14, 1, v9')
    a('v_lshlrev_b32 v14, 1, v14')
    a('v_sub_u32 v13, v13, v14')
    a('v_lshrrev_b32 v14, 3, v8')
    a('v_sub_u32 v14, v13, v14')
    a('v_add_u32 v14, 19, v14')
    a('v_lshl_add_u32 v12, v14, 4, v12')
    a(f's_mul_i32 s29, s27, {TCS}')
    a('s_lshl_b32 s30, s28, 8')
    a('s_sub_u32 s29, s29, s30')
    a('v_add_u32 v12, s29, v12')
    a('v_lshlrev_b32 v14, 5, v8')
    a('v_lshl_add_u32 v13, v13, 4, v14')
    a('s_mul_i32 s29, s27, 4608')
    a(f's_add_u32 s29, s29, {KB+512-192}')
    a('s_sub_u32 s29, s29, s30')
    a('v_add_u32 v13, s29, v13')
    for c in range(2):
        D = 40 + 8*c
        a(f's_waitcnt lgkmcnt({2-2*c})')
        P, O, O2 = 56, 62, 68
        for i in range(6): a(f'v_mov_b32 v{P+i}, v{D+1+i}')
        for i in range(6): a(f'v_alignbit_b32 v{O+i}, v{D+i+1}, v{D+i}, 16')
        for i in range(6): a(f'v_alignbit_b32 v{O2+i}, v{D+i+2}, v{D+i+1}, 16')
        src = {1: O, 2: P, 3: O2, 4: D+2, 5: O+2, 6: P+2, 7: O2+2}
        for sg in range(1, 8):
            a(f'ds_write_b128 v3, v[{src[sg]}:{src[sg]+3}] offset:{TCS*c + tbase(sg)}')
    ACC = 16
    for r in range(32): a(f'v_mov_b32 v{ACC+r}, 0') if False else None
    a('s_waitcnt lgkmcnt(0)')
    a('s_barrier')
    a('s_cmp_eq_u32 s27, 0')
    a('s_cselect_b64 s[30:31], -1, 0')
    a('v_cndmask_b32 v7, v35, v31, s[30:31]')
    a('v_cndmask_b32 v6, v34, v30, s[30:31]')
    a('v_rcp_f32 v6, v6')
    for r in range(32): a(f'v_mov_b32 v{ACC+r}, 0')
    SETS = (48, 112)
    def reads(ci, base):
        for p in range(8):
            a(f'ds_read_b128 v[{base+4*p}:{base+4*p+3}], v12 offset:{512*(7-p)+32*(6-2*ci)}')
            a(f'ds_read_b128 v[{base+32+4*p}:{base+35+4*p}], v13 offset:{512*p+32*(6-2*ci)}')
    order = sorted([(p, q) for p in range(8) for q in range(8) if p + q <= 7], key=lambda t: (max(t), t))
    reads(0, SETS[0])
    for ci in range(4):
        base = SETS[ci & 1]
        a('s_waitcnt lgkmcnt(0)')
        if ci < 3: reads(ci + 1, SETS[(ci + 1) & 1])
        for (p, q) in order:
            t = ACC + 4*(p + q)
            a(f'v_mfma_f32_16x16x32_f16 v[{t}:{t+3}], v[{base+4*p}:{base+4*p+3}], v[{base+32+4*q}:{base+35+4*q}], v[{t}:{t+3}]')
    a('v_and_b32 v1, 63, v0')
    a('v_lshlrev_b32 v1, 4, v1')
    a(f's_mul_i32 s29, s27, {TCS}')
    a('s_lshl_b32 s30, s28, 12')
    a(f's_add_u32 s31, s29, {RED}')
    a('s_add_u32 s30, s30, s31')
    a('v_add_u32 v2, s30, v1')
    a('s_xor_b32 s31, s28, 1')
    a('s_lshl_b32 s31, s31, 12')
    a('s_add_u32 s31, s31, s29')
    a(f's_add_u32 s31, s31, {RED}')
    a('v_add_u32 v3, s31, v1')
    a('v_lshlrev_b32 v4, 5, v8')
    a('v_lshl_add_u32 v4, v9, 3, v4')
    a('s_lshl_b32 s30, s28, 11')
    a('v_add_u32 v4, s30, v4')
    a(f's_add_u32 s29, s29, {4088-1536}')
    a('v_sub_u32 v5, s29, v4')
    a('s_lshl_b32 s29, s27, 12')
    a('s_lshl_b32 s30, s2, 13')
    a('s_add_u32 s30, s30, s29')
    a('v_add_u32 v4, s30, v4')
    for i in range(4): a(f'ds_read_b64 v[{48+2*i}:{49+2*i}], v5 offset:{512*(3-i)}')
    a('s_barrier')
    a('s_cmp_eq_u32 s28, 0')
    a('s_cbranch_scc0 K2_H1')
    for i in range(4): a(f'ds_write_b128 v2, v[{ACC+16+4*i}:{ACC+19+4*i}] offset:{1024*i}')
    a('s_waitcnt lgkmcnt(0)')
    a('s_barrier')
    for i in range(4): a(f'ds_read_b128 v[{64+4*i}:{67+4*i}], v3 offset:{1024*i}')
    a('s_waitcnt lgkmcnt(0)')
    for r in range(16): a(f'v_add_f32 v{64+r}, v{64+r}, v{ACC+r}')
    a('s_branch K2_EPI')
    a.label('K2_H1')
    for i in range(4): a(f'ds_write_b128 v2, v[{ACC+4*i}:{ACC+3+4*i}] offset:{1024*i}')
    a('s_waitcnt lgkmcnt(0)')
    a('s_barrier')
    for i in range(4): a(f'ds_read_b128 v[{64+4*i}:{67+4*i}], v3 offset:{1024*i}')
    a('s_waitcnt lgkmcnt(0)')
    for r in range(16): a(f'v_add_f32 v{64+r}, v{64+r}, v{ACC+16+r}')
    a.label('K2_EPI')
    a('s_cmp_eq_u32 s27, 0')
    a('s_cselect_b32 s29, s12, s13')
    a('s_lshl_b32 s30, s16, 16')
    a('s_and_b32 s31, s16, 0xffff0000')
    a('s_cmp_eq_u32 s27, 0')
    a('s_cselect_b32 s30, s30, s31')
    a(f's_add_u32 s20, s4, {GT}'); a('s_addc_u32 s21, s5, 0')
    for i in range(4):
        for k in range(2):
            y0, y1 = 64 + 4*i + 2*k, 65 + 4*i + 2*k
            a(f'v_mul_f32 v{y0}, v{y0}, v7')
            a(f'v_mul_f32 v{y1}, v{y1}, v7')
            a(f'v_cvt_pk_bf16_f32 v10, v{y0}, v{y1}')
            unpack2(a, y0, y1, 10)
            a(f'v_cvt_f32_f16_sdwa v11, v{49+2*i-k} src0_sel:WORD_1')
            a(f'v_cvt_f32_f16 v12, v{49+2*i-k}')
            a('v_mul_f32 v11, v6, v11')
            a('v_mul_f32 v12, v6, v12')
            a('v_mul_f32 v11, s30, v11')
            a('v_mul_f32 v12, s30, v12')
            a('v_cvt_pk_bf16_f32 v10, v11, v12')
            unpack2(a, 11, 12, 10)
            a(f'v_add_f32 v{y0}, v{y0}, v11')
            a(f'v_add_f32 v{y1}, v{y1}, v12')
            a(f'v_cvt_pk_bf16_f32 v10, v{y0}, v{y1}')
            unpack2(a, y0, y1, 10)
            a(f'v_mul_f32 v{y0}, s29, v{y0}')
            a(f'v_mul_f32 v{y1}, s29, v{y1}')
            a(f'v_cvt_pk_bf16_f32 v{80+2*i+k}, v{y0}, v{y1}')
        a(f'global_store_dwordx2 v4, v[{80+2*i}:{81+2*i}], s[20:21] offset:{512*i}')
    a('s_endpgm')
    a.label('K2_PACK')
    a('s_load_dwordx8 s[12:19], s[0:1], 80')
    a('s_load_dwordx2 s[20:21], s[0:1], 144')
    a('s_sub_u32 s3, s2, 224')
    a('s_waitcnt lgkmcnt(0)')
    a('s_mov_b32 s6, 896'); a('s_mov_b32 s10, 14336'); a('s_mov_b32 s11, -1')
    a('s_cmp_lt_u32 s3, 14')
    a('s_cbranch_scc0 K2_P34')
    a('s_cmp_lt_u32 s3, 7')
    a('s_cselect_b32 s4, s12, s14'); a('s_cselect_b32 s5, s13, s15')
    a(f's_mov_b32 s22, {W2P}')
    a(f's_cselect_b32 s22, {W1P}, s22')
    a(f's_cselect_b32 s11, {CS1}, -1')
    a('s_cselect_b32 s23, 0, 7')
    a('s_sub_u32 s23, s3, s23')
    a('s_mov_b32 s24, 0')
    a('s_branch K2_PGO')
    a.label('K2_P34')
    a('s_cmp_lt_u32 s3, 42')
    a('s_cbranch_scc0 K2_P4')
    a('s_mov_b32 s4, s16'); a('s_mov_b32 s5, s17'); a('s_mov_b32 s6, 3584')
    a(f's_mov_b32 s22, {W3P}'); a(f's_mov_b32 s11, {CS3}')
    a('s_sub_u32 s23, s3, 14'); a('s_mov_b32 s24, 0')
    a('s_branch K2_PGO')
    a.label('K2_P4')
    a('s_mov_b32 s4, s18'); a('s_mov_b32 s5, s19')
    a(f's_mov_b32 s22, {W4P}'); a('s_mov_b32 s10, 57344')
    a('s_sub_u32 s23, s3, 42')
    a('s_mul_i32 s24, s23, 37'); a('s_lshr_b32 s24, s24, 8')
    a('s_mul_i32 s25, s24, 7'); a('s_sub_u32 s23, s23, s25')
    a.label('K2_PGO')
    a(f's_mul_i32 s25, s24, {448*896}')
    a('s_lshl_b32 s26, s23, 7')
    a('s_add_u32 s25, s25, s26')
    a('s_add_u32 s4, s4, s25'); a('s_addc_u32 s5, s5, 0')
    a('s_lshl_b32 s25, s23, 2'); a('s_mul_i32 s25, s25, s10')
    a('s_mul_i32 s26, s24, 14336'); a('s_add_u32 s25, s25, s26'); a('s_add_u32 s25, s25, s22')
    a('s_add_u32 s8, s20, s25'); a('s_addc_u32 s9, s21, 0')
    a('v_lshrrev_b32 v1, 3, v0')
    a('v_and_b32 v2, 7, v0')
    a('v_mul_lo_u32 v3, v1, s6')
    a('v_lshl_add_u32 v3, v2, 4, v3')
    a('s_lshl_b32 s25, s6, 5')
    for i in range(14):
        if i: a('v_add_u32 v3, s25, v3')
        a(f'global_load_dwordx4 v[{16+4*i}:{19+4*i}], v3, s[4:5]')
    def fsw(d, r, t):
        a(f'v_bfe_u32 v{d}, v{r}, 1, 1')
        a(f'v_bfe_u32 v{t}, v{r}, 3, 1')
        a(f'v_lshl_or_b32 v{d}, v{t}, 1, v{d}')
    fsw(4, 1, 5)
    a('v_lshrrev_b32 v5, 1, v2')
    a('v_xor_b32 v4, v4, v5')
    a('v_lshlrev_b32 v4, 5, v4')
    a('v_lshl_add_u32 v4, v1, 7, v4')
    a('v_and_b32 v5, 1, v2')
    a('v_lshl_add_u32 v4, v5, 4, v4')
    a('v_and_b32 v5, 15, v0'); a('v_bfe_u32 v6, v0, 4, 2'); a('v_lshrrev_b32 v7, 6, v0')
    a('v_lshrrev_b32 v8, 2, v5')
    a('v_lshl_add_u32 v8, v6, 3, v8')
    fsw(9, 8, 10)
    a('v_xor_b32 v9, v9, v7')
    a('v_lshlrev_b32 v9, 5, v9')
    a('v_lshl_add_u32 v9, v8, 7, v9')
    a('v_and_b32 v10, 3, v5')
    a('v_lshl_add_u32 v9, v10, 3, v9')
    a('v_mul_lo_u32 v10, v7, s10')
    a('v_and_b32 v11, 63, v0')
    a('v_lshl_add_u32 v10, v11, 4, v10')
    for r in range(4): a(f'v_mov_b32 v{12+r}, 0x3f803f80')
    for r in range(4): a(f'v_mov_b32 v{72+r}, 0')
    for i in range(14):
        a(f's_waitcnt vmcnt({13-i})')
        a(f'ds_write_b128 v4, v[{16+4*i}:{19+4*i}] offset:{4096*i}')
    a('s_waitcnt lgkmcnt(0)')
    a('s_barrier')
    for s in range(14):
        a(f'ds_read_b64_tr_b16 v[{16+4*s}:{17+4*s}], v9 offset:{4096*s}')
        a(f'ds_read_b64_tr_b16 v[{18+4*s}:{19+4*s}], v9 offset:{4096*s+512}')
        if s >= 6:
            s1 = s - 6
            a('s_waitcnt lgkmcnt(12)')
            a(f'global_store_dwordx4 v10, v[{16+4*s1}:{19+4*s1}], s[8:9] offset:{1024*(s1&3)}')
            a(f'v_mfma_f32_16x16x32_bf16 v[72:75], v[12:15], v[{16+4*s1}:{19+4*s1}], v[72:75]')
            if (s1 & 3) == 3: a('v_add_u32 v10, 4096, v10')
    for s1 in range(8, 14):
        a(f's_waitcnt lgkmcnt({2*(13-s1)})')
        a(f'global_store_dwordx4 v10, v[{16+4*s1}:{19+4*s1}], s[8:9] offset:{1024*(s1&3)}')
        a(f'v_mfma_f32_16x16x32_bf16 v[72:75], v[12:15], v[{16+4*s1}:{19+4*s1}], v[72:75]')
        if (s1 & 3) == 3: a('v_add_u32 v10, 4096, v10')
    a('s_cmp_eq_u32 s11, -1')
    a('s_cbranch_scc1 K2_END')
    a('v_cmp_gt_u32 vcc, 16, v11')
    a('s_and_saveexec_b64 s[26:27], vcc')
    a('s_lshl_b32 s25, s23, 8')
    a('s_add_u32 s25, s25, s11')
    a('v_lshl_add_u32 v5, v7, 4, v5')
    a('v_lshl_add_u32 v5, v5, 2, s25')
    a('global_store_dword v5, v72, s[20:21]')
    a.label('K2_END')
    a('s_endpgm')
    kernel('conv_kernel', (294, 1, 1), (256, 1, 1), 78848, 176, 40, a)

def gen_all(G):
    gen_k2(G)
    try:
        import gen3
        gen3.gen_all(G)
    except ImportError:
        pass
```

```python
import math, asmlib
from asmlib import Asm
from layout import *
LOG2E = 1.4426950408889634
GC0 = -2 * LOG2E * math.sqrt(2 / math.pi)
GC1 = GC0 * 0.044715

def gelu_pair(G, a, x0, x1, t0, t1, sc0, dst):
    f32 = G.f32
    a(f'v_cvt_pk_bf16_f32 v{t0}, v{x0}, v{x1}')
    G.unpack2(a, x0, x1, t0)
    a(f'v_mul_f32 v{t0}, v{x0}, v{x0}')
    a(f'v_mul_f32 v{t1}, v{x1}, v{x1}')
    a(f'v_fmaak_f32 v{t0}, {f32(GC1)}, v{t0}, {f32(GC0)}') if False else None
    a(f'v_mul_f32 v{t0}, {f32(GC1)}, v{t0}')
    a(f'v_mul_f32 v{t1}, {f32(GC1)}, v{t1}')
    a(f'v_add_f32 v{t0}, s{sc0}, v{t0}')
    a(f'v_add_f32 v{t1}, s{sc0}, v{t1}')
    a(f'v_mul_f32 v{t0}, v{t0}, v{x0}')
    a(f'v_mul_f32 v{t1}, v{t1}, v{x1}')
    a(f'v_exp_f32 v{t0}, v{t0}')
    a(f'v_exp_f32 v{t1}, v{t1}')
    a(f'v_add_f32 v{t0}, 1.0, v{t0}')
    a(f'v_add_f32 v{t1}, 1.0, v{t1}')
    a(f'v_rcp_f32 v{t0}, v{t0}')
    a(f'v_rcp_f32 v{t1}, v{t1}')
    a(f'v_mul_f32 v{x0}, v{x0}, v{t0}')
    a(f'v_mul_f32 v{x1}, v{x1}, v{t1}')
    a(f'v_cvt_pk_bf16_f32 v{dst}, v{x0}, v{x1}')

def stats_from_partials(G, a, base, n, mb, rinv, t):
    for k in range(1, n):
        a(f'v_add_f32 v{base}, v{base}, v{base+2*k}')
        a(f'v_add_f32 v{base+1}, v{base+1}, v{base+2*k+1}')
    a(f'v_mul_f32 v{base}, {G.f32(1.0/448)}, v{base}')
    a(f'v_mul_f32 v{base+1}, {G.f32(1.0/448)}, v{base+1}')
    a(f'v_fma_f32 v{base+1}, -v{base}, v{base}, v{base+1}')
    a(f'v_max_f32 v{base+1}, 0, v{base+1}')
    G.ln_scalars(a, base, base + 1, mb, rinv, t)

def gen_k3(G):
    f32, srd, rnd_bf16, unpack2, kernel = G.f32, G.srd, G.rnd_bf16, G.unpack2, G.kernel
    a = Asm()
    AT = 18432; ST2 = 34816; ST3 = 35840; LDSZ = 36864
    a('s_cmp_ge_u32 s2, 256')
    a('s_cbranch_scc1 K3_END')
    a.stamp(real=True); a.stamp()
    a('s_load_dwordx2 s[4:5], s[0:1], 144')
    a('s_load_dwordx2 s[6:7], s[0:1], 0')
    a('s_and_b32 s3, s2, 7'); a('s_lshl_b32 s3, s3, 4'); a('s_lshr_b32 s8, s2, 4'); a('s_add_u32 s3, s3, s8')
    a('s_bfe_u32 s8, s2, 0x10003')
    a('v_lshrrev_b32 v1, 6, v0')
    a('v_readfirstlane_b32 s9, v1')
    a('s_and_b32 s10, s9, 3')
    a('s_lshr_b32 s11, s9, 2')
    a('v_and_b32 v2, 3, v0')
    a('v_bfe_u32 v3, v0, 2, 2')
    a('v_bfe_u32 v4, v0, 4, 2')
    a('v_and_b32 v5, 15, v0')
    a('v_lshrrev_b32 v6, 1, v0')
    a('v_and_b32 v7, 1, v0')
    a('v_lshlrev_b32 v8, 12, v6')
    a('v_lshl_add_u32 v8, v7, 4, v8')
    a('s_lshl_b32 s12, s3, 5')
    a('v_add_u32 v8, s12, v8')
    a('v_add_u32 v9, 0x100000, v8')
    a('v_mul_u32_u24 v10, 40, v6')
    a('v_lshl_add_u32 v10, v7, 4, v10')
    a('v_lshlrev_b32 v11, 5, v4')
    a('v_lshl_add_u32 v11, v3, 3, v11')
    a('s_lshl_b32 s12, s11, 9')
    a('v_add_u32 v11, s12, v11')
    a('s_lshl_b32 s12, s3, 4'); a('s_lshl_b32 s13, s10, 2'); a('s_add_u32 s12, s12, s13')
    a('v_add_u32 v12, s12, v2')
    a('v_mul_u32_u24 v12, 896, v12')
    a('v_add_u32 v12, v12, v11')
    a('v_lshlrev_b32 v13, 1, v11')
    a('s_waitcnt lgkmcnt(0)')
    a.stamp()
    srd(a, 16, 4, 5, GT, ACT_BYTES)
    a('buffer_load_dwordx4 v[16:19], v8, s[16:19], 0 offen')
    a('buffer_load_dwordx4 v[20:23], v9, s[16:19], 0 offen')
    X, GG, CB, SB = 24, 32, 40, 56
    a(f's_add_u32 s14, s4, {MOD+3*1792}'); a('s_addc_u32 s15, s5, 0')
    for i in range(3):
        a(f'global_load_dwordx2 v[{X+2*i}:{X+2*i+1}], v12, s[6:7] offset:{128*i}')
        a(f'global_load_dwordx4 v[{SB+4*i}:{SB+4*i+3}], v13, s[14:15] offset:{256*i}')
        a(f'global_load_dwordx4 v[{CB+4*i}:{CB+4*i+3}], v13, s[14:15] offset:{1792+256*i}')
    a('s_cmp_eq_u32 s11, 1')
    a('s_cbranch_scc1 K3_L1')
    a(f'global_load_dwordx2 v[{X+6}:{X+7}], v12, s[6:7] offset:384')
    a(f'global_load_dwordx4 v[{SB+12}:{SB+15}], v13, s[14:15] offset:768')
    a(f'global_load_dwordx4 v[{CB+12}:{CB+15}], v13, s[14:15] offset:{1792+768}')
    a.label('K3_L1')
    W = 96; CSR = 72
    a('s_cmp_eq_u32 s9, 7')
    a('s_cbranch_scc1 K3_L2')
    a('s_mul_i32 s12, s8, 14'); a('s_lshl_b32 s13, s9, 1'); a('s_add_u32 s12, s12, s13')
    a('s_lshl_b32 s13, s12, 6')
    a('v_lshl_add_u32 v14, v4, 4, s13')
    a(f's_add_u32 s20, s4, {CS1}'); a('s_addc_u32 s21, s5, 0')
    a(f'global_load_dwordx4 v[{CSR}:{CSR+3}], v14, s[20:21]')
    a(f'global_load_dwordx4 v[{CSR+4}:{CSR+7}], v14, s[20:21] offset:64')
    a('s_mul_i32 s13, s12, 14336')
    a('v_and_b32 v14, 63, v0')
    a('v_lshl_add_u32 v14, v14, 4, s13')
    a(f's_add_u32 s20, s4, {W1P}'); a('s_addc_u32 s21, s5, 0')
    for k in range(28):
        if k and k % 4 == 0: a('v_add_u32 v14, 4096, v14')
        a(f'global_load_dwordx4 v[{W+4*k}:{W+4*k+3}], v14, s[20:21] offset:{1024*(k&3)}')
    a('s_waitcnt vmcnt(28)')
    a('s_branch K3_L3')
    a.label('K3_L2')
    a('s_waitcnt vmcnt(0)')
    a.label('K3_L3')
    a.stamp()
    a('ds_write_b64 v10, v[16:17]')
    a('ds_write_b64 v10, v[18:19] offset:8')
    a('v_cmp_gt_u32 vcc, 384, v0')
    a('s_and_saveexec_b64 s[22:23], vcc')
    a('ds_write_b64 v10, v[20:21] offset:10240')
    a('ds_write_b64 v10, v[22:23] offset:10248')
    a('s_mov_b64 exec, s[22:23]')
    a('v_lshlrev_b32 v6, 4, v4')
    a('v_lshl_add_u32 v6, v2, 2, v6')
    a('v_add_u32 v6, v6, v3')
    a('s_lshl_b32 s12, s11, 8')
    a('v_add_u32 v6, s12, v6')
    a('v_mul_u32_u24 v6, 40, v6')
    a('s_lshl_b32 s12, s10, 3')
    a('v_add_u32 v6, s12, v6')
    a('v_mov_b32 v7, 0x80000000')
    a('s_cmp_eq_u32 s11, s8')
    a('s_cselect_b64 s[22:23], -1, 0')
    a('v_cndmask_b32 v8, v7, v12, s[22:23]')
    a('v_lshrrev_b32 v9, 1, v4')
    a('v_cmp_eq_u32 vcc, s8, v9')
    a('v_cndmask_b32 v9, v7, v12, vcc')
    srd(a, 24, 4, 5, X1, ACT_BYTES)
    srd(a, 28, 4, 5, H2, ACT_BYTES)
    for i in range(4):
        for k in range(2):
            r0 = CB + 4*i + 2*k
            a(f'v_add_f32 v{r0}, 1.0, v{r0}')
            a(f'v_add_f32 v{r0+1}, 1.0, v{r0+1}')
            a(f'v_cvt_pk_bf16_f32 v16, v{r0}, v{r0+1}')
            unpack2(a, r0, r0+1, 16)
    a('v_mov_b32 v15, 0x3f803f80')
    a('v_mov_b32 v80, 0'); a('v_mov_b32 v81, 0')
    a('s_waitcnt lgkmcnt(0)')
    a('s_barrier')
    a.stamp()
    for i in range(4):
        a(f'ds_read_b64_tr_b16 v[{GG+2*i}:{GG+2*i+1}], v6 offset:{2560*i}')
    a('s_waitcnt lgkmcnt(0)')
    def step1(i):
        for k in range(2):
            unpack2(a, 16, 17, X + 2*i + k)
            unpack2(a, 18, 19, GG + 2*i + k)
            a('v_add_f32 v16, v16, v18')
            a('v_add_f32 v17, v17, v19')
            a(f'v_cvt_pk_bf16_f32 v{X+2*i+k}, v16, v17')
            a(f'v_dot2_f32_bf16 v80, v{X+2*i+k}, v15, v80')
            a(f'v_dot2_f32_bf16 v81, v{X+2*i+k}, v{X+2*i+k}, v81')
        a(f'buffer_store_dwordx2 v[{X+2*i}:{X+2*i+1}], v{9 if i == 3 else 8}, s[24:27], 0 offen offset:{128*i}')
    for i in range(3): step1(i)
    a('s_cmp_eq_u32 s11, 1')
    a('s_cbranch_scc1 K3_L4')
    step1(3)
    a.label('K3_L4')
    def exch_write(st):
        for r in (80, 81):
            a(f'v_add_f32_dpp v{r}, v{r}, v{r} row_ror:4 row_mask:0xf bank_mask:0xf')
            a(f'v_add_f32_dpp v{r}, v{r}, v{r} row_ror:8 row_mask:0xf bank_mask:0xf')
        a('v_cmp_gt_u32 vcc, 4, v5')
        a('s_and_saveexec_b64 s[22:23], vcc')
        a(f'ds_write_b64 v7, v[80:81] offset:{st}')
        a('s_mov_b64 exec, s[22:23]')
    a('s_lshl_b32 s12, s10, 8')
    a('v_lshl_add_u32 v10, v2, 6, s12')
    a('s_lshl_b32 s12, s11, 5')
    a('v_lshl_add_u32 v7, v4, 3, s12')
    a('v_add_u32 v7, v7, v10')
    exch_write(ST2)
    a('s_lshl_b32 s12, s10, 2')
    a('v_add_u32 v11, s12, v2')
    a('v_lshrrev_b32 v13, 1, v3')
    a('v_lshl_add_u32 v13, v4, 1, v13')
    a('v_xor_b32 v13, v13, v11')
    a('v_lshlrev_b32 v13, 4, v13')
    a('v_lshl_add_u32 v13, v11, 10, v13')
    a('v_and_b32 v14, 1, v3')
    a('v_lshl_add_u32 v13, v14, 3, v13')
    a('s_lshl_b32 s12, s11, 9')
    a(f's_add_u32 s12, s12, {AT}')
    a('v_add_u32 v13, s12, v13')
    a('v_xor_b32 v14, 128, v13')
    a('s_waitcnt lgkmcnt(0)')
    a('s_barrier')
    a.stamp()
    for k in range(4): a(f'ds_read_b128 v[{208+4*k}:{211+4*k}], v10 offset:{ST2+16*k}')
    a('s_waitcnt lgkmcnt(0)')
    stats_from_partials(G, a, 208, 8, 82, 83, 84)
    a('v_mov_b32 v80, 0'); a('v_mov_b32 v81, 0')
    def step2(i):
        for k in range(2):
            r = X + 2*i + k
            unpack2(a, 16, 17, r)
            a('v_sub_f32 v16, v16, v82'); a('v_sub_f32 v17, v17, v82')
            a('v_cvt_pk_bf16_f32 v18, v16, v17')
            unpack2(a, 16, 17, 18)
            a('v_mul_f32 v16, v16, v83'); a('v_mul_f32 v17, v17, v83')
            a('v_cvt_pk_bf16_f32 v18, v16, v17')
            unpack2(a, 16, 17, 18)
            a(f'v_mul_f32 v16, v16, v{CB+4*i+2*k}'); a(f'v_mul_f32 v17, v17, v{CB+4*i+2*k+1}')
            a('v_cvt_pk_bf16_f32 v18, v16, v17')
            unpack2(a, 16, 17, 18)
            a(f'v_add_f32 v16, v16, v{SB+4*i+2*k}'); a(f'v_add_f32 v17, v17, v{SB+4*i+2*k+1}')
            a(f'v_cvt_pk_bf16_f32 v{GG+2*i+k}, v16, v17')
            a(f'v_dot2_f32_bf16 v80, v{GG+2*i+k}, v15, v80')
            a(f'v_dot2_f32_bf16 v81, v{GG+2*i+k}, v{GG+2*i+k}, v81')
        a(f'ds_write_b64 v{13 + (i&1)}, v[{GG+2*i}:{GG+2*i+1}] offset:{256*(i>>1)}')
        a(f'buffer_store_dwordx2 v[{GG+2*i}:{GG+2*i+1}], v{9 if i == 3 else 8}, s[28:31], 0 offen offset:{128*i}')
    for i in range(3): step2(i)
    a('s_cmp_eq_u32 s11, 1')
    a('s_cbranch_scc1 K3_L5')
    step2(3)
    a.label('K3_L5')
    exch_write(ST3)
    a('v_xor_b32 v6, v4, v5')
    a('v_lshlrev_b32 v7, 10, v5')
    a(f'v_add_u32 v7, {AT}, v7')
    for u in range(4):
        a(f'v_xor_b32 v{8+u}, {4*u}, v6')
        a(f'v_lshl_add_u32 v{8+u}, v{8+u}, 4, v7')
    a('v_lshlrev_b32 v12, 6, v5')
    a('s_waitcnt lgkmcnt(0)')
    a('s_barrier')
    a.stamp()
    a('s_cmp_eq_u32 s9, 7')
    a('s_cbranch_scc1 K3_END')
    for k in range(4): a(f'ds_read_b128 v[{208+4*k}:{211+4*k}], v12 offset:{ST3+16*k}')
    AF = 16
    for s in range(14):
        if s == 11: a('s_waitcnt lgkmcnt(11)') if False else None
        a(f'ds_read_b128 v[{AF+4*s}:{AF+4*s+3}], v{8+(s&3)} offset:{256*(s>>2)}')
    a('s_waitcnt lgkmcnt(14)')
    stats_from_partials(G, a, 208, 8, 82, 83, 84)
    ACC = 84
    a('v_sub_f32 v82, 0, v82')
    for r in range(8): a(f'v_mul_f32 v{ACC+r}, v82, v{CSR+r}')
    a('s_lshl_b32 s13, s3, 4')
    a('v_add_u32 v6, s13, v5')
    a('v_mul_u32_u24 v6, 896, v6')
    a('v_lshl_add_u32 v6, v4, 3, v6')
    a('s_mul_i32 s12, s8, 14'); a('s_lshl_b32 s13, s9, 1'); a('s_add_u32 s12, s12, s13'); a('s_lshl_b32 s12, s12, 5')
    a('v_add_u32 v6, s12, v6')
    a(f's_add_u32 s20, s4, {HH}'); a('s_addc_u32 s21, s5, 0')
    a(f's_mov_b32 s12, {f32(GC0)}')
    a('s_waitcnt lgkmcnt(0)')
    a('s_waitcnt vmcnt(6)') if False else None
    a('s_cmp_eq_u32 s11, 1')
    a('s_cbranch_scc1 K3_L6')
    a('s_waitcnt vmcnt(8)')
    a('s_branch K3_L7')
    a.label('K3_L6')
    a('s_waitcnt vmcnt(6)')
    a.label('K3_L7')
    a.stamp()
    for s in range(14):
        for jj in range(2):
            w = W + 4*(14*jj + s)
            a(f'v_mfma_f32_16x16x32_bf16 v[{ACC+4*jj}:{ACC+4*jj+3}], v[{w}:{w+3}], v[{AF+4*s}:{AF+4*s+3}], v[{ACC+4*jj}:{ACC+4*jj+3}]')
    a.stamp()
    for jj in range(2):
        for k in range(2):
            r = ACC + 4*jj + 2*k
            a(f'v_mul_f32 v{r}, v{r}, v83'); a(f'v_mul_f32 v{r+1}, v{r+1}, v83')
            gelu_pair(G, a, r, r+1, 16, 17, 12, 92 + 2*jj + k)
        a(f'global_store_dwordx2 v6, v[{92+2*jj}:{93+2*jj}], s[20:21] offset:{32*jj}')
    a('s_waitcnt vmcnt(0)') if asmlib.STAMPS else None
    a.stamp_dump(2, 4)
    a.label('K3_END')
    a('s_endpgm')
    kernel('ln_gemm1_kernel', (256, 1, 1), (512, 1, 1), LDSZ, 224, 40, a)

def gen_all(G):
    gen_k3(G)
    try:
        import gen4
        gen4.gen_all(G)
    except ImportError:
        pass
```

```python
import asmlib
from asmlib import Asm
from layout import *
from gen3 import gelu_pair, stats_from_partials, GC0

def gen_k4(G):
    f32, srd, rnd_bf16, unpack2, kernel = G.f32, G.srd, G.rnd_bf16, G.unpack2, G.kernel
    a = Asm()
    ST = 32768; LDSZ = 32768 + 2048
    a('s_cmp_ge_u32 s2, 256')
    a('s_cbranch_scc1 K4_END')
    a.stamp(real=True); a.stamp()
    a('s_load_dwordx2 s[4:5], s[0:1], 144')
    a('s_and_b32 s3, s2, 7'); a('s_lshl_b32 s3, s3, 3'); a('s_lshr_b32 s8, s2, 5'); a('s_add_u32 s3, s3, s8')
    a('s_bfe_u32 s8, s2, 0x20003')
    a('s_lshl_b32 s3, s3, 5')
    a('v_lshrrev_b32 v1, 6, v0')
    a('v_readfirstlane_b32 s9, v1')
    a('v_mul_u32_u24 v2, 1171, v0')
    a('v_lshrrev_b32 v2, 16, v2')
    a('v_mul_u32_u24 v3, 56, v2')
    a('v_sub_u32 v3, v0, v3')
    a('v_mul_u32_u24 v4, 4682, v3')
    a('v_lshrrev_b32 v4, 16, v4')
    a('v_lshrrev_b32 v5, 1, v4')
    a('v_add_u32 v5, 1, v5')
    a('v_and_b32 v6, 1, v4')
    a('v_lshl_add_u32 v6, v6, 1, -1')
    a('v_mul_i32_i24 v5, v5, v6')
    a('v_add3_u32 v5, v5, v2, s3')
    a('v_mul_i32_i24 v5, 896, v5')
    a('v_lshl_add_u32 v5, v3, 4, v5')
    a('v_xor_b32 v6, v3, v2')
    a('v_lshlrev_b32 v6, 4, v6')
    a('v_lshl_add_u32 v6, v2, 10, v6')
    a('v_xor_b32 v7, 128, v6')
    a('v_and_b32 v8, 15, v0')
    a('v_bfe_u32 v9, v0, 4, 2')
    a('s_mul_i32 s10, s8, 7'); a('s_add_u32 s10, s10, s9')
    a('v_add_u32 v10, s3, v8')
    a('v_mul_u32_u24 v10, 896, v10')
    a('v_lshl_add_u32 v10, v9, 3, v10')
    a('s_lshl_b32 s11, s10, 5')
    a('v_add_u32 v10, s11, v10')
    a('v_add_u32 v11, 14336, v10')
    a('s_mul_i32 s11, s10, 14336')
    a('v_and_b32 v12, 63, v0')
    a('v_lshl_add_u32 v12, v12, 4, s11')
    a('s_waitcnt lgkmcnt(0)')
    a.stamp()
    srd(a, 16, 4, 5, HH, ACT_BYTES)
    for i in range(4):
        if i: a('v_add_u32 v5, 7168, v5')
        a(f'buffer_load_dwordx4 v[{16+4*i}:{19+4*i}], v5, s[16:19], 0 offen')
    a(f's_add_u32 s20, s4, {H2}'); a('s_addc_u32 s21, s5, 0')
    a('global_load_dwordx2 v[32:33], v10, s[20:21]')
    a('global_load_dwordx2 v[34:35], v11, s[20:21]')
    a(f's_add_u32 s22, s4, {W2P}'); a('s_addc_u32 s23, s5, 0')
    a('s_barrier')
    W = 40
    for k in range(14):
        if k and k % 4 == 0: a('v_add_u32 v12, 4096, v12')
        a(f'global_load_dwordx4 v[{W+4*k}:{W+4*k+3}], v12, s[22:23] offset:{1024*(k&3)}')
    a('v_xor_b32 v13, v9, v8')
    a('v_lshlrev_b32 v14, 10, v8')
    for u in range(4):
        a(f'v_xor_b32 v{96+u}, {4*u}, v13')
        a(f'v_lshl_add_u32 v{96+u}, v{96+u}, 4, v14')
    for r in range(8): a(f'v_mov_b32 v{100+r}, 0')
    for i in range(4):
        a(f's_waitcnt vmcnt({19-i})')
        a(f'ds_write_b128 v{6+(i&1)}, v[{16+4*i}:{19+4*i}] offset:{8192*i}')
    a('s_waitcnt lgkmcnt(0)')
    a.stamp()
    a('s_barrier')
    a.stamp()
    AF = 108
    for s in range(14):
        for mt in range(2):
            r = AF + 8*s + 4*mt
            a(f'ds_read_b128 v[{r}:{r+3}], v{96+(s&3)} offset:{256*(s>>2)+16384*mt}')
    for s in range(14):
        a(f's_waitcnt vmcnt({13-s}) lgkmcnt({min(15, 26-2*s)})')
        for mt in range(2):
            r = AF + 8*s + 4*mt
            a(f'v_mfma_f32_16x16x32_bf16 v[{100+4*mt}:{103+4*mt}], v[{W+4*s}:{W+4*s+3}], v[{r}:{r+3}], v[{100+4*mt}:{103+4*mt}]')
    a.stamp()
    a(f's_add_u32 s20, s4, {X1P}'); a('s_addc_u32 s21, s5, 0')
    a('v_mov_b32 v15, 0x3f803f80')
    for r in range(4): a(f'v_mov_b32 v{24+r}, 0')
    for mt in range(2):
        for k in range(2):
            r = 100 + 4*mt + 2*k
            a(f'v_cvt_pk_bf16_f32 v16, v{r}, v{r+1}')
            unpack2(a, r, r+1, 16)
            unpack2(a, 17, 18, 32 + 2*mt + k)
            a(f'v_add_f32 v{r}, v{r}, v17'); a(f'v_add_f32 v{r+1}, v{r+1}, v18')
            a(f'v_cvt_pk_bf16_f32 v{20+2*mt+k}, v{r}, v{r+1}')
            a(f'v_dot2_f32_bf16 v{24+2*mt}, v{20+2*mt+k}, v15, v{24+2*mt}')
            a(f'v_dot2_f32_bf16 v{25+2*mt}, v{20+2*mt+k}, v{20+2*mt+k}, v{25+2*mt}')
        a(f'global_store_dwordx2 v{10+mt}, v[{20+2*mt}:{21+2*mt}], s[20:21]')
    for sw in ('v_permlane32_swap_b32', 'v_permlane16_swap_b32'):
        for r in range(4): a(f'v_mov_b32 v{28+r}, v{24+r}')
        for r in range(4): a(f'{sw} v{24+r}, v{28+r}')
        for r in range(4): a(f'v_add_f32 v{24+r}, v{24+r}, v{28+r}')
    a('s_lshl_b32 s11, s9, 3')
    a('v_lshl_add_u32 v13, v8, 6, s11')
    a('v_and_b32 v14, 63, v0')
    a('v_cmp_gt_u32 vcc, 16, v14')
    a('s_and_saveexec_b64 s[24:25], vcc')
    a(f'ds_write_b64 v13, v[24:25] offset:{ST}')
    a(f'ds_write_b64 v13, v[26:27] offset:{ST+1024}')
    a('s_mov_b64 exec, s[24:25]')
    a('s_waitcnt lgkmcnt(0)')
    a('s_barrier')
    a('v_cmp_gt_u32 vcc, 32, v0')
    a('s_and_saveexec_b64 s[24:25], vcc')
    a('s_cbranch_execz K4_DONE')
    a('v_lshlrev_b32 v13, 6, v0')
    for k in range(4): a(f'ds_read_b128 v[{16+4*k}:{19+4*k}], v13 offset:{ST+16*k}')
    a('v_add_u32 v14, s3, v0')
    a('v_lshlrev_b32 v14, 5, v14')
    a('s_lshl_b32 s11, s8, 3')
    a('v_add_u32 v14, s11, v14')
    a(f's_add_u32 s20, s4, {STAT}'); a('s_addc_u32 s21, s5, 0')
    a('s_waitcnt lgkmcnt(0)')
    for k in range(1, 7):
        a(f'v_add_f32 v16, v16, v{16+2*k}'); a(f'v_add_f32 v17, v17, v{17+2*k}')
    a('global_store_dwordx2 v14, v[16:17], s[20:21]')
    a.label('K4_DONE')
    a('s_waitcnt vmcnt(0)') if asmlib.STAMPS else None
    a.stamp_dump(3, 4)
    a.label('K4_END')
    a('s_endpgm')
    kernel('gemm2_kernel', (256, 1, 1), (448, 1, 1), LDSZ, 220, 40, a)

def gen_k5(G):
    f32, srd, rnd_bf16, unpack2, kernel = G.f32, G.srd, G.rnd_bf16, G.unpack2, G.kernel
    a = Asm()
    RS = 114688; LDSZ = RS + 1024
    a('s_cmp_ge_u32 s2, 224')
    a('s_cbranch_scc1 K5_END')
    a.stamp(real=True); a.stamp()
    a('s_load_dwordx2 s[4:5], s[0:1], 144')
    a('s_lshr_b32 s6, s2, 3')
    a('s_mul_i32 s7, s6, 37'); a('s_lshr_b32 s7, s7, 8')
    a('s_mul_i32 s8, s7, 7'); a('s_sub_u32 s8, s6, s8')
    a('s_bfe_u32 s6, s2, 0x20001'); a('s_lshl_b32 s6, s6, 2'); a('s_add_u32 s3, s6, s7')
    a('s_and_b32 s6, s2, 1'); a('s_mul_i32 s6, s6, 7'); a('s_add_u32 s8, s8, s6')
    a('s_lshl_b32 s3, s3, 7')
    a('v_lshrrev_b32 v1, 6, v0')
    a('v_readfirstlane_b32 s9, v1')
    a('v_and_b32 v2, 15, v0')
    a('v_bfe_u32 v3, v0, 4, 2')
    a('v_and_b32 v4, 63, v0')
    a('s_lshl_b32 s10, s9, 5'); a('s_add_u32 s10, s10, s3')
    a('v_add_u32 v5, s10, v2')
    a('v_mul_u32_u24 v5, 896, v5')
    a('v_lshl_add_u32 v5, v3, 4, v5')
    a('v_add_u32 v6, 14336, v5')
    a('s_lshl_b32 s10, s8, 3'); a('s_lshl_b32 s11, s9, 1'); a('s_add_u32 s10, s10, s11')
    a('s_mul_i32 s11, s10, 14336')
    a('v_lshl_add_u32 v7, v4, 4, s11')
    a('s_lshl_b32 s11, s10, 6')
    a('v_lshl_add_u32 v8, v3, 4, s11')
    a('v_add_u32 v9, s3, v0')
    a('v_lshlrev_b32 v9, 5, v9')
    a('s_waitcnt lgkmcnt(0)')
    a.stamp()
    srd(a, 16, 4, 5, X1P, ACT_BYTES)
    srd(a, 20, 4, 5, STAT, 65536)
    a('v_cmp_gt_u32 vcc, 128, v0')
    a('v_mov_b32 v10, 0x80000000')
    a('v_cndmask_b32 v9, v10, v9, vcc')
    a('buffer_load_dwordx4 v[16:19], v9, s[20:23], 0 offen')
    a('buffer_load_dwordx4 v[20:23], v9, s[20:23], 0 offen offset:16')
    a(f's_add_u32 s24, s4, {CS3}'); a('s_addc_u32 s25, s5, 0')
    a('global_load_dwordx4 v[24:27], v8, s[24:25]')
    a('global_load_dwordx4 v[28:31], v8, s[24:25] offset:64')
    a(f's_add_u32 s24, s4, {W3P}'); a('s_addc_u32 s25, s5, 0')
    a('s_mul_i32 s12, s9, 28672')
    a('s_add_u32 s13, s12, 14336')
    a('v_add_u32 v11, 14336, v7')
    W = 96
    for s in range(14):
        a(f's_add_u32 m0, s12, {1024*s - 64*s}')
        a(f'buffer_load_dwordx4 v5, s[16:19], 0 offen offset:{64*s} lds')
        a(f's_add_u32 m0, s13, {1024*s - 64*s}')
        a(f'buffer_load_dwordx4 v6, s[16:19], 0 offen offset:{64*s} lds')
        if s and s % 4 == 0:
            a('v_add_u32 v7, 4096, v7'); a('v_add_u32 v11, 4096, v11')
        a(f'global_load_dwordx4 v[{W+4*s}:{W+4*s+3}], v7, s[24:25] offset:{1024*(s&3)}')
        a(f'global_load_dwordx4 v[{W+56+4*s}:{W+59+4*s}], v11, s[24:25] offset:{1024*(s&3)}')
    a.stamp()
    a('s_waitcnt vmcnt(58)')
    stats_from_partials(G, a, 16, 4, 32, 33, 34)
    a('v_sub_f32 v32, 0, v32')
    a('v_lshlrev_b32 v9, 3, v0')
    a('v_cmp_gt_u32 vcc, 128, v0')
    a('s_and_saveexec_b64 s[26:27], vcc')
    a(f'v_add_u32 v9, {RS}, v9')
    a('ds_write_b64 v9, v[32:33]')
    a('s_mov_b64 exec, s[26:27]')
    a('v_lshlrev_b32 v9, 3, v2')
    a(f'v_add_u32 v9, {RS}, v9')
    a('v_lshlrev_b32 v10, 4, v4')
    a('v_add_u32 v11, 57344, v10')
    a('v_add_u32 v12, s3, v2')
    a('v_mul_u32_u24 v12, 3584, v12')
    a('v_lshl_add_u32 v12, v3, 3, v12')
    a('s_lshl_b32 s11, s10, 5')
    a('v_add_u32 v12, s11, v12')
    a(f's_add_u32 s24, s4, {HM}'); a('s_addc_u32 s25, s5, 0')
    a(f's_mov_b32 s12, {f32(GC0)}')
    a('s_waitcnt vmcnt(0) lgkmcnt(0)')
    a.stamp()
    a('s_barrier')
    a.stamp()
    MS = 208
    for mt in range(8): a(f'ds_read_b64 v[{MS+2*mt}:{MS+2*mt+1}], v9 offset:{128*mt}')
    ACC = 32; AF = 64
    for half in range(2):
        base = 10 + half
        def rd(s, buf):
            for m in range(4):
                r = AF + 16*buf + 4*m
                a(f'ds_read_b128 v[{r}:{r+3}], v{base} offset:{14336*m + 1024*s}')
        rd(0, 0)
        if half == 0: a('s_waitcnt lgkmcnt(4)')
        for m in range(4):
            for jj in range(2):
                for r in range(4):
                    a(f'v_mul_f32 v{ACC+8*m+4*jj+r}, v{MS+2*(4*half+m)}, v{24+4*jj+r}')
        for s in range(14):
            if s < 13: rd(s + 1, (s + 1) & 1)
            a(f's_waitcnt lgkmcnt({4 if s < 13 else 0})')
            for m in range(4):
                r = AF + 16*(s & 1) + 4*m
                for jj in range(2):
                    w = W + 56*jj + 4*s; t = ACC + 8*m + 4*jj
                    a(f'v_mfma_f32_16x16x32_bf16 v[{t}:{t+3}], v[{w}:{w+3}], v[{r}:{r+3}], v[{t}:{t+3}]')
        a.stamp()
        for m in range(4):
            ri = MS + 2*(4*half + m) + 1
            for jj in range(2):
                for k in range(2):
                    r = ACC + 8*m + 4*jj + 2*k
                    a(f'v_mul_f32 v{r}, v{r}, v{ri}'); a(f'v_mul_f32 v{r+1}, v{r+1}, v{ri}')
                    gelu_pair(G, a, r, r+1, 16, 17, 12, 20 + k)
                a(f'global_store_dwordx2 v12, v[20:21], s[24:25] offset:{32*jj}')
            a('v_add_u32 v12, 57344, v12')
        a.stamp()
    a('s_waitcnt vmcnt(0)') if asmlib.STAMPS else None
    a.stamp_dump(4, 4)
    a.label('K5_END')
    a('s_endpgm')
    kernel('gemm3_kernel', (224, 1, 1), (256, 1, 1), LDSZ, 224, 40, a)

def gen_k6(G):
    f32, srd, rnd_bf16, unpack2, kernel = G.f32, G.srd, G.rnd_bf16, G.unpack2, G.kernel
    a = Asm()
    NSLOT = 5; SLOT = 28672; LDSZ = NSLOT * SLOT
    a('s_cmp_ge_u32 s2, 224')
    a('s_cbranch_scc1 K6_END')
    a.stamp(real=True); a.stamp()
    a('s_load_dwordx4 s[4:7], s[0:1], 128')
    a('s_load_dwordx2 s[4+4:5+4], s[0:1], 144'.replace('4+4', '8').replace('5+4', '9'))
    a('s_lshr_b32 s10, s2, 3')
    a('s_mul_i32 s11, s10, 37'); a('s_lshr_b32 s11, s11, 8')
    a('s_mul_i32 s12, s11, 7'); a('s_sub_u32 s12, s10, s12')
    a('s_and_b32 s10, s2, 7'); a('s_lshl_b32 s10, s10, 2'); a('s_add_u32 s3, s10, s11')
    a('s_lshl_b32 s3, s3, 6')
    a('v_lshrrev_b32 v1, 6, v0')
    a('v_readfirstlane_b32 s13, v1')
    a('v_and_b32 v2, 15, v0'); a('v_bfe_u32 v3, v0, 4, 2'); a('v_and_b32 v4, 63, v0')
    a('s_lshl_b32 s10, s13, 4'); a('s_add_u32 s10, s10, s3')
    a('v_add_u32 v5, s10, v2')
    a('v_mul_u32_u24 v5, 3584, v5')
    a('v_lshl_add_u32 v5, v3, 4, v5')
    a('s_lshl_b32 s10, s12, 2'); a('s_add_u32 s10, s10, s13')
    a('s_mul_i32 s11, s10, 57344')
    a('v_lshl_add_u32 v6, v4, 4, s11')
    a('v_add_u32 v7, s3, v2')
    a('v_mul_u32_u24 v7, 896, v7')
    a('v_lshl_add_u32 v7, v3, 3, v7')
    a('s_lshl_b32 s11, s10, 5')
    a('v_add_u32 v7, s11, v7')
    a('s_lshl_b32 s11, s10, 6')
    a('v_lshl_add_u32 v8, v3, 4, s11')
    a('v_lshlrev_b32 v9, 4, v4')
    a('s_lshl_b32 s14, s13, 10')
    a('s_waitcnt lgkmcnt(0)')
    a.stamp()
    srd(a, 16, 8, 9, HM, 2048*3584)
    a(f's_add_u32 s20, s8, {W4P}'); a('s_addc_u32 s21, s9, 0')
    W = 64
    issue = []
    def dma(st):
        for ks in range(7):
            k = 7*st + ks
            off = 64 * ks
            a(f's_add_u32 m0, s14, {(st % NSLOT)*SLOT + 4096*ks - off}')
            a(f'buffer_load_dwordx4 v5, s[16:19], 0 offen offset:{off} lds')
            issue.append(('D', st))
        a('v_add_u32 v5, 448, v5')
    def wld(st):
        for ks in range(7):
            r = W + 28*(st & 3) + 4*ks
            if ks == 4: a('v_add_u32 v6, 4096, v6')
            a(f'global_load_dwordx4 v[{r}:{r+3}], v6, s[20:21] offset:{1024*(ks&3)}')
            issue.append(('W', st))
        a('v_add_u32 v6, 3072, v6')
    for st in range(5):
        dma(st)
        if st < 4: wld(st)
    for r in range(16): a(f'v_mov_b32 v{32+r}, 0')
    for sl in range(NSLOT): a(f'v_add_u32 v{10+sl}, {sl*SLOT}, v9')
    a.stamp()
    AF = 176
    for st in range(8):
        last = max(i for i, t in enumerate(issue) if t in (('D', st), ('W', st)))
        a(f's_waitcnt vmcnt({len(issue) - 1 - last})')
        a('s_barrier')
        if st >= 1:
            if st + 4 < 8: dma(st + 4)
            if st + 3 < 8: wld(st + 3)
        if st == 5:
            a(f's_add_u32 s22, s8, {X1P}'); a('s_addc_u32 s23, s9, 0')
            a(f's_add_u32 s24, s8, {X1}'); a('s_addc_u32 s25, s9, 0')
            a(f's_add_u32 s26, s8, {MOD+5*1792}'); a('s_addc_u32 s27, s9, 0')
            a('v_mov_b32 v15, v7')
            for mt in range(4):
                if mt: a('v_add_u32 v15, 14336, v15')
                a(f'global_load_dwordx2 v[{208+2*mt}:{209+2*mt}], v15, s[22:23]'); issue.append(('E', 0))
                a(f'global_load_dwordx2 v[{216+2*mt}:{217+2*mt}], v15, s[24:25]'); issue.append(('E', 0))
            a('global_load_dwordx4 v[224:227], v8, s[26:27]'); issue.append(('E', 0))
        base = 10 + st % NSLOT
        def rd(ks, buf):
            for m in range(4):
                r = AF + 16*buf + 4*m
                a(f'ds_read_b128 v[{r}:{r+3}], v{base} offset:{4096*ks + 1024*m}')
        rd(0, 0)
        for ks in range(7):
            if ks < 6: rd(ks + 1, (ks + 1) & 1)
            a(f's_waitcnt lgkmcnt({4 if ks < 6 else 0})')
            w = W + 28*(st & 3) + 4*ks
            for m in range(4):
                r = AF + 16*(ks & 1) + 4*m
                a(f'v_mfma_f32_16x16x32_bf16 v[{32+4*m}:{35+4*m}], v[{w}:{w+3}], v[{r}:{r+3}], v[{32+4*m}:{35+4*m}]')
        if st in (0, 3, 7): a.stamp()
    a('s_waitcnt vmcnt(0)')
    for mt in range(4):
        for k in range(2):
            r = 32 + 4*mt + 2*k
            a(f'v_cvt_pk_bf16_f32 v16, v{r}, v{r+1}')
            unpack2(a, r, r+1, 16)
            unpack2(a, 17, 18, 208 + 2*mt + k)
            a(f'v_add_f32 v{r}, v{r}, v17'); a(f'v_add_f32 v{r+1}, v{r+1}, v18')
            a(f'v_cvt_pk_bf16_f32 v16, v{r}, v{r+1}')
            unpack2(a, r, r+1, 16)
            a(f'v_mul_f32 v{r}, v{r}, v{224+2*k}'); a(f'v_mul_f32 v{r+1}, v{r+1}, v{225+2*k}')
            a(f'v_cvt_pk_bf16_f32 v16, v{r}, v{r+1}')
            unpack2(a, r, r+1, 16)
            unpack2(a, 17, 18, 216 + 2*mt + k)
            a(f'v_add_f32 v{r}, v{r}, v17'); a(f'v_add_f32 v{r+1}, v{r+1}, v18')
            a(f'v_cvt_pk_bf16_f32 v{20+k}, v{r}, v{r+1}')
        a('global_store_dwordx2 v7, v[20:21], s[4:5]')
        if mt < 3: a('v_add_u32 v7, 14336, v7')
    a('s_waitcnt vmcnt(0)') if asmlib.STAMPS else None
    a.stamp_dump(5, 8)
    a.label('K6_END')
    a('s_endpgm')
    kernel('gemm4_kernel', (224, 1, 1), (256, 1, 1), LDSZ, 228, 40, a)

def gen_all(G):
    gen_k4(G); gen_k5(G); gen_k6(G)
```

```python
MB = 1 << 20
MOD = 0
KSC = 16384
CS1 = 20480
CS3 = 24576
STAT = 32768
XNT = 1 * MB
KP = 4 * MB
GT = 8 * MB
X1 = 12 * MB
H2 = 16 * MB
HH = 20 * MB
X1P = 24 * MB
HM = 28 * MB
W1P = 40 * MB
W2P = 41 * MB
W3P = 42 * MB
W4P = 44 * MB
ACT_BYTES = 2048 * 448 * 2
```

```python
import sys, struct
sys.path.insert(0, 'work')
from asmlib import Asm
from layout import *

LOG2E = 1.4426950408889634
def f32(x): return '0x%08x' % struct.unpack('<I', struct.pack('<f', x))[0]

KERNELS = []

def kernel(name, grid, block, lds, vgpr, sgpr, a):
    import asmlib
    if asmlib.STAMPS: vgpr = max(vgpr, 252); sgpr = 100
    KERNELS.append((name, grid, block, lds, vgpr, sgpr, a.text()))

def srd(a, s, lo, hi, off, size):
    if off:
        a(f's_add_u32 s{s}, s{lo}, {off}')
        a(f's_addc_u32 s{s+1}, s{hi}, 0')
    else:
        a(f's_mov_b32 s{s}, s{lo}')
        a(f's_mov_b32 s{s+1}, s{hi}')
    a(f's_mov_b32 s{s+2}, {size}')
    a(f's_mov_b32 s{s+3}, 0x00020000')

def rnd_bf16(a, d, s):
    a(f'v_cvt_pk_bf16_f32 v{d}, v{s}, v{s}')
    a(f'v_lshlrev_b32 v{d}, 16, v{d}')

def unpack2(a, lo, hi, s):
    a(f'v_lshlrev_b32 v{lo}, 16, v{s}')
    a(f'v_and_b32 v{hi}, 0xffff0000, v{s}')

def ln_scalars(a, mean, var, mb, rinv, t):
    rnd_bf16(a, mb, mean)
    rnd_bf16(a, t, var)
    a(f'v_add_f32 v{t}, {f32(1e-5)}, v{t}')
    rnd_bf16(a, t, t)
    a(f'v_sqrt_f32 v{t}, v{t}')
    rnd_bf16(a, t, t)
    a(f'v_rcp_f32 v{rinv}, v{t}')

def gen_k1():
    a = Asm()
    a('s_cmp_lt_u32 s2, 84')
    a('s_cbranch_scc1 K1_MOD')
    a('s_cmp_lt_u32 s2, 148')
    a('s_cbranch_scc1 K1_LN')
    a('s_cmp_lt_u32 s2, 596')
    a('s_cbranch_scc1 K1_KGEN')
    a('s_endpgm')
    a.label('K1_MOD')
    a('s_load_dwordx4 s[4:7], s[0:1], 112')
    a('s_load_dwordx2 s[8:9], s[0:1], 144')
    a('v_lshrrev_b32 v1, 2, v0')
    a('v_and_b32 v2, 3, v0')
    a('s_lshl_b32 s3, s2, 6')
    a('v_mul_u32_u24 v3, 5376, v1')
    a('v_lshl_add_u32 v3, v2, 4, v3')
    a('v_add_u32 v3, s3, v3')
    a('v_lshlrev_b32 v4, 1, v1')
    a('s_waitcnt lgkmcnt(0)')
    for i in range(7):
        a(f'global_load_ushort v{8+i}, v4, s[4:5] offset:{128*i}')
    for i in range(7):
        if i: a(f'v_add_u32 v3, {64*5376}, v3')
        a(f'global_load_dwordx4 v[{16+4*i}:{19+4*i}], v3, s[6:7]')
    for j in range(8): a(f'v_mov_b32 v{48+j}, 0')
    a('s_waitcnt vmcnt(7)')
    for i in range(7):
        r = 8 + i
        a(f'v_lshlrev_b32 v{r}, 16, v{r}')
        a(f'v_mul_f32 v5, {f32(-LOG2E)}, v{r}')
        a('v_exp_f32 v5, v5')
        a('v_add_f32 v5, 1.0, v5')
        a('v_rcp_f32 v5, v5')
        a(f'v_mul_f32 v{r}, v{r}, v5')
        rnd_bf16(a, r, r)
    for i in range(7):
        a(f's_waitcnt vmcnt({6-i})')
        for jj in range(4):
            unpack2(a, 5, 6, 16 + 4*i + jj)
            a(f'v_fmac_f32 v{48+2*jj}, v{8+i}, v5')
            a(f'v_fmac_f32 v{49+2*jj}, v{8+i}, v6')
    a('v_lshlrev_b32 v5, 5, v0')
    a('ds_write_b128 v5, v[48:51]')
    a('ds_write_b128 v5, v[52:55] offset:16')
    a('v_and_b32 v6, 31, v0')
    a('v_lshrrev_b32 v7, 5, v0')
    a('v_lshlrev_b32 v8, 2, v6')
    a('v_lshl_add_u32 v9, v7, 10, v8')
    a('v_lshl_add_u32 v10, v7, 7, v8')
    a('s_waitcnt lgkmcnt(0)')
    a('s_barrier')
    for u in range(8): a(f'ds_read_b32 v{16+u}, v9 offset:{128*u}')
    a('s_waitcnt lgkmcnt(0)')
    for u in range(1, 8): a(f'v_add_f32 v16, v16, v{16+u}')
    a('ds_write_b32 v10, v16 offset:8192')
    a('s_waitcnt lgkmcnt(0)')
    a('s_barrier')
    a('v_cmp_gt_u32 vcc, 32, v0')
    a('s_and_saveexec_b64 s[10:11], vcc')
    a('s_cbranch_execz K1_END')
    for u in range(8): a(f'ds_read_b32 v{16+u}, v8 offset:{8192+128*u}')
    a('s_waitcnt lgkmcnt(0)')
    for u in range(1, 8): a(f'v_add_f32 v16, v16, v{16+u}')
    rnd_bf16(a, 16, 16)
    a('s_lshl_b32 s3, s2, 7')
    a('v_add_u32 v8, s3, v8')
    a(f'global_store_dword v8, v16, s[8:9] offset:{MOD}')
    a('s_endpgm')
    a.label('K1_LN')
    a('s_load_dwordx2 s[4:5], s[0:1], 0')
    a('s_load_dwordx2 s[8:9], s[0:1], 144')
    a('s_sub_u32 s3, s2, 84')
    a('v_lshrrev_b32 v1, 3, v0')
    a('v_and_b32 v2, 7, v0')
    a('s_mul_i32 s6, s3, 28672')
    a('v_mul_u32_u24 v3, 896, v1')
    a('v_lshl_add_u32 v3, v2, 4, v3')
    a('v_add_u32 v3, s6, v3')
    a('s_waitcnt lgkmcnt(0)')
    for i in range(7):
        a(f'global_load_dwordx4 v[{16+4*i}:{19+4*i}], v3, s[4:5] offset:{128*i}')
    a('v_mul_u32_u24 v4, 928, v1')
    a('v_lshrrev_b32 v5, 3, v1')
    a('v_lshl_add_u32 v4, v5, 7, v4')
    a('v_lshl_add_u32 v4, v2, 4, v4')
    a('v_and_b32 v5, 15, v0')
    a('v_bfe_u32 v6, v0, 4, 2')
    a('v_lshrrev_b32 v7, 6, v0')
    a('v_lshrrev_b32 v8, 2, v5')
    a('v_lshl_add_u32 v8, v6, 3, v8')
    a('v_mul_u32_u24 v8, 928, v8')
    a('v_lshl_add_u32 v8, v6, 7, v8')
    a('v_lshl_add_u32 v8, v7, 5, v8')
    a('v_and_b32 v9, 3, v5')
    a('v_lshl_add_u32 v8, v9, 3, v8')
    a('v_lshl_add_u32 v9, v7, 4, v5')
    a('v_lshlrev_b32 v9, 6, v9')
    a('v_lshl_add_u32 v9, v6, 4, v9')
    a('v_add_u32 v9, s6, v9')
    a(f's_add_u32 s8, s8, {XNT}')
    a('s_addc_u32 s9, s9, 0')
    F = 48
    for i in range(7):
        a(f's_waitcnt vmcnt({6-i})')
        for jj in range(4):
            unpack2(a, F + 8*i + 2*jj, F + 8*i + 2*jj + 1, 16 + 4*i + jj)
    for c in range(4): a(f'v_add_f32 v{10+c}, v{F+c}, v{F+4+c}')
    for k in range(8, 56): a(f'v_add_f32 v{10+(k&3)}, v{10+(k&3)}, v{F+k}')
    a('v_add_f32 v10, v10, v11'); a('v_add_f32 v12, v12, v13'); a('v_add_f32 v10, v10, v12')
    def red8(r):
        a(f'v_add_f32_dpp v{r}, v{r}, v{r} quad_perm:[1,0,3,2] row_mask:0xf bank_mask:0xf')
        a(f'v_add_f32_dpp v{r}, v{r}, v{r} quad_perm:[2,3,0,1] row_mask:0xf bank_mask:0xf')
        a(f'v_add_f32_dpp v{r}, v{r}, v{r} row_half_mirror row_mask:0xf bank_mask:0xf')
    red8(10)
    a(f'v_mul_f32 v10, {f32(1.0/448)}, v10')
    for c in range(4): a(f'v_mov_b32 v{11+c}, 0')
    for k in range(56):
        a(f'v_sub_f32 v{104+(k&3)}, v{F+k}, v10')
        a(f'v_fmac_f32 v{11+(k&3)}, v{104+(k&3)}, v{104+(k&3)}')
    a('v_add_f32 v11, v11, v12'); a('v_add_f32 v13, v13, v14'); a('v_add_f32 v11, v11, v13')
    red8(11)
    a(f'v_mul_f32 v11, {f32(1.0/448)}, v11')
    ln_scalars(a, 10, 11, 12, 13, 14)
    for k in range(28):
        x0, x1 = F + 2*k, F + 2*k + 1
        a(f'v_sub_f32 v{x0}, v{x0}, v12')
        a(f'v_sub_f32 v{x1}, v{x1}, v12')
        a(f'v_cvt_pk_bf16_f32 v{16+k}, v{x0}, v{x1}')
        unpack2(a, x0, x1, 16 + k)
        a(f'v_mul_f32 v{x0}, v{x0}, v13')
        a(f'v_mul_f32 v{x1}, v{x1}, v13')
        a(f'v_cvt_pk_bf16_f32 v{16+k}, v{x0}, v{x1}')
    for i in range(7):
        a(f'ds_write_b128 v4, v[{16+4*i}:{19+4*i}] offset:{128*i}')
    a('s_waitcnt lgkmcnt(0)')
    a('s_barrier')
    for i in range(7):
        a(f'ds_read_b64_tr_b16 v[{48+4*i}:{49+4*i}], v8 offset:{128*i}')
        a(f'ds_read_b64_tr_b16 v[{50+4*i}:{51+4*i}], v8 offset:{128*i+4*928}')
    for i in range(7):
        a(f's_waitcnt lgkmcnt({12-2*i})')
        if i: a('v_add_u32 v9, 4096, v9')
        a(f'global_store_dwordx4 v9, v[{48+4*i}:{51+4*i}], s[8:9]')
    a('s_endpgm')
    a.label('K1_KGEN')
    a('s_load_dwordx8 s[4:11], s[0:1], 8')
    a('s_load_dwordx4 s[12:15], s[0:1], 40')
    a('s_load_dwordx2 s[16:17], s[0:1], 56')
    a('s_load_dwordx2 s[18:19], s[0:1], 144')
    a('s_sub_u32 s3, s2, 148')
    a('s_lshl_b32 s20, s3, 9')
    a('v_lshl_add_u32 v1, v0, 1, s20')
    a('s_lshl_b32 s21, s3, 1')
    a('v_mov_b32 v2, s21')
    a('s_waitcnt lgkmcnt(0)')
    for i in range(6):
        a(f'global_load_ushort v{4+i}, v1, s[{4+2*i}:{5+2*i}]')
    a('global_load_ushort v10, v2, s[16:17]')
    a('v_lshlrev_b32 v112, 2, v0')
    for r in range(1, 16): a(f'v_xor_b32 v{112+r}, {r<<4}, v112')
    a('s_waitcnt vmcnt(0)')
    for i in range(7): a(f'v_lshlrev_b32 v{4+i}, 16, v{4+i}')
    a(f'v_mul_f32 v10, {f32(LOG2E)}, v10')
    a('v_exp_f32 v10, v10')
    rnd_bf16(a, 10, 10)
    a('v_mul_f32 v4, v10, v4')
    a('v_mul_f32 v5, v10, v5')
    a('v_mul_f32 v6, v10, v6')
    a('v_mul_f32 v7, v10, v7')
    a('v_mul_f32 v11, v9, v7')
    a('v_fma_f32 v12, v8, v6, -v11')
    a('v_mul_f32 v11, v9, v6')
    a('v_fma_f32 v13, v8, v7, v11')
    a('v_max_f32 v11, |v12|, |v13|')
    for sh in (1, 2, 4, 8):
        a(f'v_max_f32_dpp v11, v11, v11 row_shr:{sh} row_mask:0xf bank_mask:0xf')
    a('v_max_f32_dpp v11, v11, v11 row_bcast:15 row_mask:0xa bank_mask:0xf')
    a('v_max_f32_dpp v11, v11, v11 row_bcast:31 row_mask:0xc bank_mask:0xf')
    a('v_readlane_b32 s22, v11, 63')
    a('v_lshrrev_b32 v14, 6, v0')
    a('v_lshlrev_b32 v14, 2, v14')
    a('v_mov_b32 v15, s22')
    LK = 0; YB = 4608; XB = 20992
    a(f'ds_write_b32 v14, v15 offset:{LK+4352}')
    a(f'v_mul_f32 v4, {f32(LOG2E)}, v4')
    a(f'v_mul_f32 v5, {f32(1/(2*3.141592653589793))}, v5')
    def cexp(dr, di, mult):
        a(f'v_mul_f32 v16, {f32(mult)}, v4')
        a(f'v_mul_f32 v17, {f32(mult)}, v5')
        a('v_exp_f32 v16, v16')
        a('v_fract_f32 v17, v17')
        a(f'v_cos_f32 v{dr}, v17')
        a(f'v_sin_f32 v{di}, v17')
        a(f'v_mul_f32 v{dr}, v{dr}, v16')
        a(f'v_mul_f32 v{di}, v{di}, v16')
    def cmul(d, x, y):
        a(f'v_mul_f32 v16, v{x+1}, v{y+1}')
        a(f'v_mul_f32 v17, v{x+1}, v{y}')
        a(f'v_fma_f32 v{d}, v{x}, v{y}, -v16')
        a(f'v_fma_f32 v{d+1}, v{x}, v{y+1}, v17')
    E = lambda e: 20 + 2*(e-1)
    Y = lambda j: 34 + 2*(j-1)
    M = lambda m: 64 + 2*(m-1)
    T = lambda e: 96 + 2*e
    cexp(E(1), E(1)+1, 1.0); cexp(Y(1), Y(1)+1, 8.0); cexp(M(1), M(1)+1, 128.0)
    a('s_waitcnt lgkmcnt(0)')
    a('s_barrier')
    a('v_mov_b32 v14, 0')
    a(f'ds_read_b128 v[16:19], v14 offset:{LK+4352}')
    a('s_waitcnt lgkmcnt(0)')
    a('v_max3_f32 v16, v16, v17, v18')
    a('v_max_f32 v16, v16, v19')
    a('v_frexp_exp_i32_f32 v16, v16')
    a('v_mov_b32 v17, 100')
    a('v_med3_i32 v16, v16, -100, v17') if False else None
    a('v_max_i32 v16, -16, v16') if False else None
    a('v_min_i32 v16, v16, v17')
    a('v_sub_u32 v17, 0, v17')
    a('v_max_i32 v16, v16, v17')
    a('v_sub_u32 v17, 15, v16')
    a(f'v_ldexp_f32 v{T(0)}, v12, v17')
    a(f'v_ldexp_f32 v{T(0)+1}, v13, v17')
    a('v_add_u32 v17, -7, v16')
    a('v_ldexp_f32 v15, 1.0, v17')
    def chain(R, n):
        for j in range(2, n + 1):
            p = 1 << (j.bit_length() - 1)
            if p == j: cmul(R(j), R(j//2), R(j//2))
            else: cmul(R(j), R(p), R(j-p))
    def wr(row, re, im, neg=False, base=XB):
        a(f'v_cvt_pk_f16_f32 v18, v{re}, {"-" if neg else ""}v{im}')
        a(f'ds_write_b32 v{112+(row&15)}, v18 offset:{base+row*1024}')
    chain(Y, 15)
    a('v_mov_b32 v18, 0x3c00')
    a(f'ds_write_b32 v112, v18 offset:{YB}')
    for j in range(1, 16): wr(j, Y(j), Y(j)+1, neg=True, base=YB)
    chain(E, 7); chain(M, 16)
    for e in range(1, 8): cmul(T(e), T(0), E(e))
    TMP = 14
    def xrow(row, t, m):
        if m == 0: wr(row, T(t), T(t)+1)
        else:
            cmul(2, T(t), M(m)); wr(row, 2, 3)
    for i in range(2):
        for e in range(8): xrow(8*i + e, e, i)
    for i in range(2):
        for e in range(4): xrow(16 + 4*i + e, 2*e, 2 + i)
    for i in range(4):
        for e in range(2): xrow(24 + 2*i + e, 4*e, 4 + i)
    for i in range(8): xrow(32 + i, 0, 8 + i)
    xrow(40, 0, 16)
    a('v_cmp_eq_u32 vcc, 0, v0')
    a('s_and_saveexec_b64 s[24:25], vcc')
    a('s_lshl_b32 s26, s3, 2')
    a('v_mov_b32 v14, s26')
    a(f's_add_u32 s28, s18, {KSC}')
    a('s_addc_u32 s29, s19, 0')
    a('global_store_dword v14, v15, s[28:29]')
    a('s_mov_b64 exec, s[24:25]')
    a('v_lshrrev_b32 v1, 6, v0')
    a('v_and_b32 v2, 15, v0')
    a('v_bfe_u32 v3, v0, 4, 2')
    a('v_readfirstlane_b32 s23, v1')
    a('v_xor_b32 v4, v3, v2')
    a('s_waitcnt lgkmcnt(0)')
    a('s_barrier')
    a('s_cmp_eq_u32 s23, 3')
    a('s_cbranch_scc1 K1_KG_SKIP')
    a('v_lshlrev_b32 v5, 10, v2')
    for u in range(4):
        a(f'v_xor_b32 v{6+u}, {4*u}, v4')
        a(f'v_lshl_add_u32 v{6+u}, v{6+u}, 4, v5')
    a('s_lshl_b32 s24, s23, 14')
    a(f's_add_u32 s24, s24, {XB}')
    for u in range(4): a(f'v_add_u32 v{10+u}, s24, v{6+u}')
    for r in range(4): a(f'v_mov_b32 v{16+r}, 0')
    for s in range(16):
        a(f'ds_read_b128 v[{32+8*s}:{35+8*s}], v{10+(s&3)} offset:{256*(s>>2)}') if s < 8 else None
        a(f'ds_read_b128 v[{36+8*s}:{39+8*s}], v{6+(s&3)} offset:{YB+256*(s>>2)}') if s < 8 else None
    for s in range(16):
        b = 32 + 8*(s & 7)
        a(f's_waitcnt lgkmcnt({14 if s < 8 else 2*(15-s)})')
        a(f'v_mfma_f32_16x16x32_f16 v[16:19], v[{b}:{b+3}], v[{b+4}:{b+7}], v[16:19]')
        if s < 8:
            s2 = s + 8
            a(f'ds_read_b128 v[{b}:{b+3}], v{10+(s2&3)} offset:{256*(s2>>2)}')
            a(f'ds_read_b128 v[{b+4}:{b+7}], v{6+(s2&3)} offset:{YB+256*(s2>>2)}')
    a('v_lshlrev_b32 v20, 3, v2')
    a('s_cmp_eq_u32 s23, 0')
    a('s_cbranch_scc1 K1_KG_T0')
    a('s_cmp_eq_u32 s23, 1')
    a('s_cbranch_scc1 K1_KG_T1')
    a('v_lshl_add_u32 v21, v3, 9, v20')
    for r in range(4): a(f'v_add_u32 v{24+r}, {1024+128*r}, v21')
    a('s_branch K1_KG_W')
    a.label('K1_KG_T0')
    a('v_and_b32 v21, 1, v3')
    a('v_lshl_add_u32 v21, v21, 2, v20')
    a('v_lshrrev_b32 v22, 1, v3')
    a('v_lshl_add_u32 v21, v22, 7, v21')
    for r in range(4): a(f'v_add_u32 v{24+r}, {r}, v21')
    a('s_branch K1_KG_W')
    a.label('K1_KG_T1')
    a('v_lshl_add_u32 v21, v3, 7, v20')
    a('v_lshl_add_u32 v22, v3, 8, v20')
    a('v_cmp_gt_u32 vcc, 2, v3')
    for r in range(4):
        a(f'v_add_u32 v28, {256+2*r}, v21')
        a(f'v_add_u32 v29, {4*(r&1)+128*(r>>1)}, v22')
        a(f'v_cndmask_b32 v{24+r}, v29, v28, vcc')
    a.label('K1_KG_W')
    a('v_mov_b32 v28, 2056')
    for r in range(4):
        a(f'v_min_u32 v{24+r}, v{24+r}, v28')
        a(f'v_lshlrev_b32 v{24+r}, 1, v{24+r}')
        a(f'v_mul_f32 v{16+r}, {f32(2.0**-8)}, v{16+r}')
        a(f'v_cvt_f16_f32 v{16+r}, v{16+r}')
        a(f'ds_write_b16 v{24+r}, v{16+r} offset:{LK}')
    a.label('K1_KG_SKIP')
    a('v_lshlrev_b32 v1, 3, v0')
    for p in range(4):
        a(f'v_add_u32 v2, {2*p}, v1')
        a(f'v_add_u32 v3, {2*p+1}, v1')
        a('v_cvt_f32_u32 v2, v2')
        a('v_cvt_f32_u32 v3, v3')
        a('v_cvt_pk_bf16_f32 v4, v2, v3')
        unpack2(a, 2, 3, 4)
        a('v_cvt_u32_f32 v2, v2')
        a('v_cvt_u32_f32 v3, v3')
        a(f'v_lshlrev_b32 v{32+2*p}, 1, v2')
        a(f'v_lshlrev_b32 v{33+2*p}, 1, v3')
    a('s_lshl_b32 s24, s3, 12')
    a('v_lshl_add_u32 v5, v0, 4, s24')
    a(f's_add_u32 s18, s18, {KP}')
    a('s_addc_u32 s19, s19, 0')
    a('s_waitcnt lgkmcnt(0)')
    a('s_barrier')
    for p in range(4):
        a(f'ds_read_u16 v{40+p}, v{32+2*p} offset:{LK}')
        a(f'ds_read_u16 v{44+p}, v{33+2*p} offset:{LK}')
    a('s_waitcnt lgkmcnt(0)')
    for p in range(4): a(f'v_lshl_or_b32 v{40+p}, v{44+p}, 16, v{40+p}')
    a('global_store_dwordx4 v5, v[40:43], s[18:19]')
    a.label('K1_END')
    a('s_endpgm')
    kernel('prep_kernel', (596, 1, 1), (256, 1, 1), 70144, 128, 32, a)

HEADER = open('adaLN_cond__ssm_conv_s4__mixer_s_mlp__prompt.s.ref').read().split('; Override launch')[0]

def emit(path):
    out = [HEADER.rstrip('\n')]
    for (name, grid, block, lds, vgpr, sgpr, text) in KERNELS:
        out.append(f'; @launch kernel={name} grid=({grid[0]},{grid[1]},{grid[2]}) block=({block[0]},{block[1]},{block[2]}) lds={lds}')
    out.append('.amdgcn_target "amdgcn-amd-amdhsa--gfx950"')
    out.append('.text')
    for (name, grid, block, lds, vgpr, sgpr, text) in KERNELS:
        out += [f'.globl {name}', '.p2align 8', f'.type {name},@function', f'{name}:', text]
    out.append('.section .rodata,"a"')
    for (name, grid, block, lds, vgpr, sgpr, text) in KERNELS:
        acc = (vgpr + 3) // 4 * 4
        out += ['.p2align 6', f'.amdhsa_kernel {name}', f'  .amdhsa_next_free_vgpr {vgpr}', f'  .amdhsa_next_free_sgpr {sgpr}',
                f'  .amdhsa_accum_offset {acc}', '  .amdhsa_group_segment_fixed_size 0', '  .amdhsa_kernarg_size 152',
                '  .amdhsa_user_sgpr_count 2', '  .amdhsa_user_sgpr_kernarg_segment_ptr 1', '  .amdhsa_system_sgpr_workgroup_id_x 1',
                '.end_amdhsa_kernel']
    open(path, 'w').write('\n'.join(out) + '\n')

if __name__ == '__main__':
    gen_k1()
    try:
        import gen2
        gen2.gen_all(sys.modules[__name__])
    except ImportError:
        pass
    emit('adaLN_cond__ssm_conv_s4__mixer_s_mlp__prompt.s')
```

```python
import sys, struct
sys.path.insert(0, 'work')
import asmlib
from asmlib import Asm
from layout import *

LOG2E = 1.4426950408889634
def f32(x): return '0x%08x' % struct.unpack('<I', struct.pack('<f', x))[0]

KERNELS = []

def kernel(name, grid, block, lds, vgpr, sgpr, a):
    import asmlib
    if asmlib.STAMPS: vgpr = max(vgpr, 252); sgpr = 100
    KERNELS.append((name, grid, block, lds, vgpr, sgpr, a.text()))

def srd(a, s, lo, hi, off, size):
    if off:
        a(f's_add_u32 s{s}, s{lo}, {off}')
        a(f's_addc_u32 s{s+1}, s{hi}, 0')
    else:
        a(f's_mov_b32 s{s}, s{lo}')
        a(f's_mov_b32 s{s+1}, s{hi}')
    a(f's_mov_b32 s{s+2}, {size}')
    a(f's_mov_b32 s{s+3}, 0x00020000')

def rnd_bf16(a, d, s):
    a(f'v_cvt_pk_bf16_f32 v{d}, v{s}, v{s}')
    a(f'v_lshlrev_b32 v{d}, 16, v{d}')

def unpack2(a, lo, hi, s):
    a(f'v_lshlrev_b32 v{lo}, 16, v{s}')
    a(f'v_and_b32 v{hi}, 0xffff0000, v{s}')

def ln_scalars(a, mean, var, mb, rinv, t):
    rnd_bf16(a, mb, mean)
    rnd_bf16(a, t, var)
    a(f'v_add_f32 v{t}, {f32(1e-5)}, v{t}')
    rnd_bf16(a, t, t)
    a(f'v_sqrt_f32 v{t}, v{t}')
    rnd_bf16(a, t, t)
    a(f'v_rcp_f32 v{rinv}, v{t}')

def gen_k1():
    a = Asm()
    a('s_cmp_lt_u32 s2, 84')
    a('s_cbranch_scc1 K1_MOD')
    a('s_cmp_lt_u32 s2, 148')
    a('s_cbranch_scc1 K1_LN')
    a('s_cmp_lt_u32 s2, 596')
    a('s_cbranch_scc1 K1_KGEN')
    a('s_endpgm')
    a.label('K1_MOD')
    a.stamp(real=True); a.stamp()
    a('s_load_dwordx4 s[4:7], s[0:1], 112')
    a('s_load_dwordx2 s[8:9], s[0:1], 144')
    a('v_lshrrev_b32 v1, 2, v0')
    a('v_and_b32 v2, 3, v0')
    a('s_lshl_b32 s3, s2, 6')
    a('v_mul_u32_u24 v3, 5376, v1')
    a('v_lshl_add_u32 v3, v2, 4, v3')
    a('v_add_u32 v3, s3, v3')
    a('v_lshlrev_b32 v4, 1, v1')
    a('s_waitcnt lgkmcnt(0)')
    for i in range(7):
        a(f'global_load_ushort v{8+i}, v4, s[4:5] offset:{128*i}')
    for i in range(7):
        if i: a(f'v_add_u32 v3, {64*5376}, v3')
        a(f'global_load_dwordx4 v[{16+4*i}:{19+4*i}], v3, s[6:7]')
    for j in range(8): a(f'v_mov_b32 v{48+j}, 0')
    a('s_waitcnt vmcnt(7)')
    for i in range(7):
        r = 8 + i
        a(f'v_lshlrev_b32 v{r}, 16, v{r}')
        a(f'v_mul_f32 v5, {f32(-LOG2E)}, v{r}')
        a('v_exp_f32 v5, v5')
        a('v_add_f32 v5, 1.0, v5')
        a('v_rcp_f32 v5, v5')
        a(f'v_mul_f32 v{r}, v{r}, v5')
        rnd_bf16(a, r, r)
    for i in range(7):
        a(f's_waitcnt vmcnt({6-i})')
        for jj in range(4):
            unpack2(a, 5, 6, 16 + 4*i + jj)
            a(f'v_fmac_f32 v{48+2*jj}, v{8+i}, v5')
            a(f'v_fmac_f32 v{49+2*jj}, v{8+i}, v6')
    a.stamp()
    a('v_lshlrev_b32 v5, 5, v0')
    a('ds_write_b128 v5, v[48:51]')
    a('ds_write_b128 v5, v[52:55] offset:16')
    a('v_and_b32 v6, 31, v0')
    a('v_lshrrev_b32 v7, 5, v0')
    a('v_lshlrev_b32 v8, 2, v6')
    a('v_lshl_add_u32 v9, v7, 10, v8')
    a('v_lshl_add_u32 v10, v7, 7, v8')
    a('s_waitcnt lgkmcnt(0)')
    a('s_barrier')
    for u in range(8): a(f'ds_read_b32 v{16+u}, v9 offset:{128*u}')
    a('s_waitcnt lgkmcnt(0)')
    for u in range(1, 8): a(f'v_add_f32 v16, v16, v{16+u}')
    a('ds_write_b32 v10, v16 offset:8192')
    a('s_waitcnt lgkmcnt(0)')
    a('s_barrier')
    if asmlib.STAMPS:
        a.stamp(); a.stamp(); a.stamp(); a.stamp(); a.stamp()
        a.stamp_dump(0, 8)
    a('v_cmp_gt_u32 vcc, 32, v0')
    a('s_and_saveexec_b64 s[10:11], vcc')
    a('s_cbranch_execz K1_END')
    for u in range(8): a(f'ds_read_b32 v{16+u}, v8 offset:{8192+128*u}')
    a('s_waitcnt lgkmcnt(0)')
    for u in range(1, 8): a(f'v_add_f32 v16, v16, v{16+u}')
    rnd_bf16(a, 16, 16)
    a('s_lshl_b32 s3, s2, 7')
    a('v_add_u32 v8, s3, v8')
    a(f'global_store_dword v8, v16, s[8:9] offset:{MOD}')
    a('s_endpgm')
    a.label('K1_LN')
    a.stamp(real=True); a.stamp()
    a('s_load_dwordx2 s[4:5], s[0:1], 0')
    a('s_load_dwordx2 s[8:9], s[0:1], 144')
    a('s_sub_u32 s3, s2, 84')
    a('v_lshrrev_b32 v1, 3, v0')
    a('v_and_b32 v2, 7, v0')
    a('s_mul_i32 s6, s3, 28672')
    a('v_mul_u32_u24 v3, 896, v1')
    a('v_lshl_add_u32 v3, v2, 4, v3')
    a('v_add_u32 v3, s6, v3')
    a('s_waitcnt lgkmcnt(0)')
    for i in range(7):
        a(f'global_load_dwordx4 v[{16+4*i}:{19+4*i}], v3, s[4:5] offset:{128*i}')
    a('v_mul_u32_u24 v4, 928, v1')
    a('v_lshrrev_b32 v5, 3, v1')
    a('v_lshl_add_u32 v4, v5, 7, v4')
    a('v_lshl_add_u32 v4, v2, 4, v4')
    a('v_and_b32 v5, 15, v0')
    a('v_bfe_u32 v6, v0, 4, 2')
    a('v_lshrrev_b32 v7, 6, v0')
    a('v_lshrrev_b32 v8, 2, v5')
    a('v_lshl_add_u32 v8, v6, 3, v8')
    a('v_mul_u32_u24 v8, 928, v8')
    a('v_lshl_add_u32 v8, v6, 7, v8')
    a('v_lshl_add_u32 v8, v7, 5, v8')
    a('v_and_b32 v9, 3, v5')
    a('v_lshl_add_u32 v8, v9, 3, v8')
    a('v_lshl_add_u32 v9, v7, 4, v5')
    a('v_lshlrev_b32 v9, 6, v9')
    a('v_lshl_add_u32 v9, v6, 4, v9')
    a('v_add_u32 v9, s6, v9')
    a(f's_add_u32 s10, s8, {XNT}')
    a('s_addc_u32 s11, s9, 0')
    F = 48
    for i in range(7):
        a(f's_waitcnt vmcnt({6-i})')
        for jj in range(4):
            unpack2(a, F + 8*i + 2*jj, F + 8*i + 2*jj + 1, 16 + 4*i + jj)
    a.stamp()
    for c in range(4): a(f'v_add_f32 v{10+c}, v{F+c}, v{F+4+c}')
    for k in range(8, 56): a(f'v_add_f32 v{10+(k&3)}, v{10+(k&3)}, v{F+k}')
    a('v_add_f32 v10, v10, v11'); a('v_add_f32 v12, v12, v13'); a('v_add_f32 v10, v10, v12')
    def red8(r):
        a(f'v_add_f32_dpp v{r}, v{r}, v{r} quad_perm:[1,0,3,2] row_mask:0xf bank_mask:0xf')
        a(f'v_add_f32_dpp v{r}, v{r}, v{r} quad_perm:[2,3,0,1] row_mask:0xf bank_mask:0xf')
        a(f'v_add_f32_dpp v{r}, v{r}, v{r} row_half_mirror row_mask:0xf bank_mask:0xf')
    red8(10)
    a(f'v_mul_f32 v10, {f32(1.0/448)}, v10')
    for c in range(4): a(f'v_mov_b32 v{11+c}, 0')
    for k in range(56):
        a(f'v_sub_f32 v{104+(k&3)}, v{F+k}, v10')
        a(f'v_fmac_f32 v{11+(k&3)}, v{104+(k&3)}, v{104+(k&3)}')
    a('v_add_f32 v11, v11, v12'); a('v_add_f32 v13, v13, v14'); a('v_add_f32 v11, v11, v13')
    red8(11)
    a(f'v_mul_f32 v11, {f32(1.0/448)}, v11')
    ln_scalars(a, 10, 11, 12, 13, 14)
    for k in range(28):
        x0, x1 = F + 2*k, F + 2*k + 1
        a(f'v_sub_f32 v{x0}, v{x0}, v12')
        a(f'v_sub_f32 v{x1}, v{x1}, v12')
        a(f'v_cvt_pk_bf16_f32 v{16+k}, v{x0}, v{x1}')
        unpack2(a, x0, x1, 16 + k)
        a(f'v_mul_f32 v{x0}, v{x0}, v13')
        a(f'v_mul_f32 v{x1}, v{x1}, v13')
        a(f'v_cvt_pk_bf16_f32 v{16+k}, v{x0}, v{x1}')
    for i in range(7):
        a(f'ds_write_b128 v4, v[{16+4*i}:{19+4*i}] offset:{128*i}')
    a('s_waitcnt lgkmcnt(0)')
    a.stamp()
    a('s_barrier')
    a.stamp()
    for i in range(7):
        a(f'ds_read_b64_tr_b16 v[{48+4*i}:{49+4*i}], v8 offset:{128*i}')
        a(f'ds_read_b64_tr_b16 v[{50+4*i}:{51+4*i}], v8 offset:{128*i+4*928}')
    for i in range(7):
        a(f's_waitcnt lgkmcnt({12-2*i})')
        if i: a('v_add_u32 v9, 4096, v9')
        a(f'global_store_dwordx4 v9, v[{48+4*i}:{51+4*i}], s[10:11]')
    if asmlib.STAMPS:
        a('s_waitcnt vmcnt(0)'); a.stamp(); a.stamp(); a.stamp()
        a.stamp_dump(0, 8)
    a('s_endpgm')
    a.label('K1_KGEN')
    a.stamp(real=True); a.stamp()
    a('s_load_dwordx8 s[4:11], s[0:1], 8')
    a('s_load_dwordx4 s[12:15], s[0:1], 40')
    a('s_load_dwordx2 s[16:17], s[0:1], 56')
    a('s_load_dwordx2 s[18:19], s[0:1], 144')
    a('s_sub_u32 s3, s2, 148')
    a('s_lshl_b32 s20, s3, 9')
    a('v_lshl_add_u32 v1, v0, 1, s20')
    a('s_lshl_b32 s21, s3, 1')
    a('v_mov_b32 v2, s21')
    a('s_waitcnt lgkmcnt(0)')
    a.stamp()
    for i in range(6):
        a(f'global_load_ushort v{4+i}, v1, s[{4+2*i}:{5+2*i}]')
    a('global_load_ushort v10, v2, s[16:17]')
    a('v_lshlrev_b32 v112, 2, v0')
    for r in range(1, 16): a(f'v_xor_b32 v{112+r}, {r<<4}, v112')
    a('s_waitcnt vmcnt(0)')
    a.stamp()
    for i in range(7): a(f'v_lshlrev_b32 v{4+i}, 16, v{4+i}')
    a(f'v_mul_f32 v10, {f32(LOG2E)}, v10')
    a('v_exp_f32 v10, v10')
    rnd_bf16(a, 10, 10)
    a('v_mul_f32 v4, v10, v4')
    a('v_mul_f32 v5, v10, v5')
    a('v_mul_f32 v6, v10, v6')
    a('v_mul_f32 v7, v10, v7')
    a('v_mul_f32 v11, v9, v7')
    a('v_fma_f32 v12, v8, v6, -v11')
    a('v_mul_f32 v11, v9, v6')
    a('v_fma_f32 v13, v8, v7, v11')
    a('v_max_f32 v11, |v12|, |v13|')
    for sh in (1, 2, 4, 8):
        a(f'v_max_f32_dpp v11, v11, v11 row_shr:{sh} row_mask:0xf bank_mask:0xf')
    a('v_max_f32_dpp v11, v11, v11 row_bcast:15 row_mask:0xa bank_mask:0xf')
    a('v_max_f32_dpp v11, v11, v11 row_bcast:31 row_mask:0xc bank_mask:0xf')
    a('v_readlane_b32 s22, v11, 63')
    a('v_lshrrev_b32 v14, 6, v0')
    a('v_lshlrev_b32 v14, 2, v14')
    a('v_mov_b32 v15, s22')
    LK = 0; YB = 4608; XB = 20992
    a(f'ds_write_b32 v14, v15 offset:{LK+4352}')
    a(f'v_mul_f32 v4, {f32(LOG2E)}, v4')
    a(f'v_mul_f32 v5, {f32(1/(2*3.141592653589793))}, v5')
    def cexp(dr, di, mult):
        a(f'v_mul_f32 v16, {f32(mult)}, v4')
        a(f'v_mul_f32 v17, {f32(mult)}, v5')
        a('v_exp_f32 v16, v16')
        a('v_fract_f32 v17, v17')
        a(f'v_cos_f32 v{dr}, v17')
        a(f'v_sin_f32 v{di}, v17')
        a(f'v_mul_f32 v{dr}, v{dr}, v16')
        a(f'v_mul_f32 v{di}, v{di}, v16')
    def cmul(d, x, y):
        a(f'v_mul_f32 v16, v{x+1}, v{y+1}')
        a(f'v_mul_f32 v17, v{x+1}, v{y}')
        a(f'v_fma_f32 v{d}, v{x}, v{y}, -v16')
        a(f'v_fma_f32 v{d+1}, v{x}, v{y+1}, v17')
    E = lambda e: 20 + 2*(e-1)
    Y = lambda j: 34 + 2*(j-1)
    M = lambda m: 64 + 2*(m-1)
    T = lambda e: 96 + 2*e
    cexp(E(1), E(1)+1, 1.0); cexp(Y(1), Y(1)+1, 8.0); cexp(M(1), M(1)+1, 128.0)
    a('s_waitcnt lgkmcnt(0)')
    a('s_barrier')
    a.stamp()
    a('v_mov_b32 v14, 0')
    a(f'ds_read_b128 v[16:19], v14 offset:{LK+4352}')
    a('s_waitcnt lgkmcnt(0)')
    a('v_max3_f32 v16, v16, v17, v18')
    a('v_max_f32 v16, v16, v19')
    a('v_frexp_exp_i32_f32 v16, v16')
    a('v_mov_b32 v17, 100')
    a('v_med3_i32 v16, v16, -100, v17') if False else None
    a('v_max_i32 v16, -16, v16') if False else None
    a('v_min_i32 v16, v16, v17')
    a('v_sub_u32 v17, 0, v17')
    a('v_max_i32 v16, v16, v17')
    a('v_sub_u32 v17, 15, v16')
    a(f'v_ldexp_f32 v{T(0)}, v12, v17')
    a(f'v_ldexp_f32 v{T(0)+1}, v13, v17')
    a('v_add_u32 v17, -7, v16')
    a('v_ldexp_f32 v15, 1.0, v17')
    def chain(R, n):
        for j in range(2, n + 1):
            p = 1 << (j.bit_length() - 1)
            if p == j: cmul(R(j), R(j//2), R(j//2))
            else: cmul(R(j), R(p), R(j-p))
    def wr(row, re, im, neg=False, base=XB):
        a(f'v_cvt_pk_f16_f32 v18, v{re}, {"-" if neg else ""}v{im}')
        a(f'ds_write_b32 v{112+(row&15)}, v18 offset:{base+row*1024}')
    chain(Y, 15)
    a('v_mov_b32 v18, 0x3c00')
    a(f'ds_write_b32 v112, v18 offset:{YB}')
    for j in range(1, 16): wr(j, Y(j), Y(j)+1, neg=True, base=YB)
    chain(E, 7); chain(M, 16)
    for e in range(1, 8): cmul(T(e), T(0), E(e))
    TMP = 14
    def xrow(row, t, m):
        if m == 0: wr(row, T(t), T(t)+1)
        else:
            cmul(2, T(t), M(m)); wr(row, 2, 3)
    for i in range(2):
        for e in range(8): xrow(8*i + e, e, i)
    for i in range(2):
        for e in range(4): xrow(16 + 4*i + e, 2*e, 2 + i)
    for i in range(4):
        for e in range(2): xrow(24 + 2*i + e, 4*e, 4 + i)
    for i in range(8): xrow(32 + i, 0, 8 + i)
    xrow(40, 0, 16)
    a('v_cmp_eq_u32 vcc, 0, v0')
    a('s_and_saveexec_b64 s[24:25], vcc')
    a('s_lshl_b32 s26, s3, 2')
    a('v_mov_b32 v14, s26')
    a(f's_add_u32 s28, s18, {KSC}')
    a('s_addc_u32 s29, s19, 0')
    a('global_store_dword v14, v15, s[28:29]')
    a('s_mov_b64 exec, s[24:25]')
    a('v_lshrrev_b32 v1, 6, v0')
    a('v_and_b32 v2, 15, v0')
    a('v_bfe_u32 v3, v0, 4, 2')
    a('v_readfirstlane_b32 s23, v1')
    a('v_xor_b32 v4, v3, v2')
    a('s_waitcnt lgkmcnt(0)')
    a.stamp()
    a('s_barrier')
    a.stamp()
    a('s_cmp_eq_u32 s23, 3')
    a('s_cbranch_scc1 K1_KG_SKIP')
    a('v_lshlrev_b32 v5, 10, v2')
    for u in range(4):
        a(f'v_xor_b32 v{6+u}, {4*u}, v4')
        a(f'v_lshl_add_u32 v{6+u}, v{6+u}, 4, v5')
    a('s_lshl_b32 s24, s23, 14')
    a(f's_add_u32 s24, s24, {XB}')
    for u in range(4): a(f'v_add_u32 v{10+u}, s24, v{6+u}')
    for r in range(4): a(f'v_mov_b32 v{16+r}, 0')
    for s in range(16):
        a(f'ds_read_b128 v[{32+8*s}:{35+8*s}], v{10+(s&3)} offset:{256*(s>>2)}') if s < 8 else None
        a(f'ds_read_b128 v[{36+8*s}:{39+8*s}], v{6+(s&3)} offset:{YB+256*(s>>2)}') if s < 8 else None
    for s in range(16):
        b = 32 + 8*(s & 7)
        a(f's_waitcnt lgkmcnt({14 if s < 8 else 2*(15-s)})')
        a(f'v_mfma_f32_16x16x32_f16 v[16:19], v[{b}:{b+3}], v[{b+4}:{b+7}], v[16:19]')
        if s < 8:
            s2 = s + 8
            a(f'ds_read_b128 v[{b}:{b+3}], v{10+(s2&3)} offset:{256*(s2>>2)}')
            a(f'ds_read_b128 v[{b+4}:{b+7}], v{6+(s2&3)} offset:{YB+256*(s2>>2)}')
    a('v_lshlrev_b32 v20, 3, v2')
    a('s_cmp_eq_u32 s23, 0')
    a('s_cbranch_scc1 K1_KG_T0')
    a('s_cmp_eq_u32 s23, 1')
    a('s_cbranch_scc1 K1_KG_T1')
    a('v_lshl_add_u32 v21, v3, 9, v20')
    for r in range(4): a(f'v_add_u32 v{24+r}, {1024+128*r}, v21')
    a('s_branch K1_KG_W')
    a.label('K1_KG_T0')
    a('v_and_b32 v21, 1, v3')
    a('v_lshl_add_u32 v21, v21, 2, v20')
    a('v_lshrrev_b32 v22, 1, v3')
    a('v_lshl_add_u32 v21, v22, 7, v21')
    for r in range(4): a(f'v_add_u32 v{24+r}, {r}, v21')
    a('s_branch K1_KG_W')
    a.label('K1_KG_T1')
    a('v_lshl_add_u32 v21, v3, 7, v20')
    a('v_lshl_add_u32 v22, v3, 8, v20')
    a('v_cmp_gt_u32 vcc, 2, v3')
    for r in range(4):
        a(f'v_add_u32 v28, {256+2*r}, v21')
        a(f'v_add_u32 v29, {4*(r&1)+128*(r>>1)}, v22')
        a(f'v_cndmask_b32 v{24+r}, v29, v28, vcc')
    a.label('K1_KG_W')
    a('v_mov_b32 v28, 2056')
    for r in range(4):
        a(f'v_min_u32 v{24+r}, v{24+r}, v28')
        a(f'v_lshlrev_b32 v{24+r}, 1, v{24+r}')
        a(f'v_mul_f32 v{16+r}, {f32(2.0**-8)}, v{16+r}')
        a(f'v_cvt_f16_f32 v{16+r}, v{16+r}')
        a(f'ds_write_b16 v{24+r}, v{16+r} offset:{LK}')
    a.label('K1_KG_SKIP')
    a('v_lshlrev_b32 v1, 3, v0')
    for p in range(4):
        a(f'v_add_u32 v2, {2*p}, v1')
        a(f'v_add_u32 v3, {2*p+1}, v1')
        a('v_cvt_f32_u32 v2, v2')
        a('v_cvt_f32_u32 v3, v3')
        a('v_cvt_pk_bf16_f32 v4, v2, v3')
        unpack2(a, 2, 3, 4)
        a('v_cvt_u32_f32 v2, v2')
        a('v_cvt_u32_f32 v3, v3')
        a(f'v_lshlrev_b32 v{32+2*p}, 1, v2')
        a(f'v_lshlrev_b32 v{33+2*p}, 1, v3')
    a('s_lshl_b32 s24, s3, 12')
    a('v_lshl_add_u32 v5, v0, 4, s24')
    a(f's_add_u32 s30, s18, {KP}')
    a('s_addc_u32 s31, s19, 0')
    a('s_waitcnt lgkmcnt(0)')
    a.stamp()
    a('s_barrier')
    for p in range(4):
        a(f'ds_read_u16 v{40+p}, v{32+2*p} offset:{LK}')
        a(f'ds_read_u16 v{44+p}, v{33+2*p} offset:{LK}')
    a('s_waitcnt lgkmcnt(0)')
    for p in range(4): a(f'v_lshl_or_b32 v{40+p}, v{44+p}, 16, v{40+p}')
    a('global_store_dwordx4 v5, v[40:43], s[30:31]')
    a('s_waitcnt vmcnt(0)') if asmlib.STAMPS else None
    a.stamp_dump(0, 18)
    a.label('K1_END')
    a('s_endpgm')
    kernel('prep_kernel', (596, 1, 1), (256, 1, 1), 70144, 128, 32, a)

HEADER = open('adaLN_cond__ssm_conv_s4__mixer_s_mlp__prompt.s.ref').read().split('; Override launch')[0]

def emit(path):
    out = [HEADER.rstrip('\n')]
    for (name, grid, block, lds, vgpr, sgpr, text) in KERNELS:
        out.append(f'; @launch kernel={name} grid=({grid[0]},{grid[1]},{grid[2]}) block=({block[0]},{block[1]},{block[2]}) lds={lds}')
    out.append('.amdgcn_target "amdgcn-amd-amdhsa--gfx950"')
    out.append('.text')
    for (name, grid, block, lds, vgpr, sgpr, text) in KERNELS:
        out += [f'.globl {name}', '.p2align 8', f'.type {name},@function', f'{name}:', text]
    out.append('.section .rodata,"a"')
    for (name, grid, block, lds, vgpr, sgpr, text) in KERNELS:
        acc = (vgpr + 3) // 4 * 4
        out += ['.p2align 6', f'.amdhsa_kernel {name}', f'  .amdhsa_next_free_vgpr {vgpr}', f'  .amdhsa_next_free_sgpr {sgpr}',
                f'  .amdhsa_accum_offset {acc}', '  .amdhsa_group_segment_fixed_size 0', '  .amdhsa_kernarg_size 152',
                '  .amdhsa_user_sgpr_count 2', '  .amdhsa_user_sgpr_kernarg_segment_ptr 1', '  .amdhsa_system_sgpr_workgroup_id_x 1',
                '.end_amdhsa_kernel']
    open(path, 'w').write('\n'.join(out) + '\n')

if __name__ == '__main__':
    gen_k1()
    try:
        import gen2
        gen2.gen_all(sys.modules[__name__])
    except ImportError:
        pass
    emit('adaLN_cond__ssm_conv_s4__mixer_s_mlp__prompt.s')
```

```python
import asmlib
from asmlib import Asm
from layout import *

def gen_k2(G):
    f32, srd, rnd_bf16, unpack2, kernel = G.f32, G.srd, G.rnd_bf16, G.unpack2, G.kernel
    a = Asm()
    a('s_cmp_lt_u32 s2, 224')
    a('s_cbranch_scc1 K2_CONV')
    a('s_cmp_lt_u32 s2, 294')
    a('s_cbranch_scc1 K2_PACK')
    a('s_endpgm')
    a.label('K2_CONV')
    TCS = 34816; KB = 69632; RED = 17408
    osig = [0, 4, 8, 12, 2, 6, 10, 14]
    tbase = lambda sg: sg * 4352 + osig[sg] * 16
    a.stamp(real=True); a.stamp()
    a('s_load_dwordx2 s[4:5], s[0:1], 144')
    a('s_load_dwordx2 s[6:7], s[0:1], 64')
    a('s_lshl_b32 s3, s2, 3')
    a('s_lshl_b32 s16, s2, 2')
    a('v_lshrrev_b32 v1, 2, v0')
    a('v_mul_u32_u24 v1, 28672, v1')
    a('v_and_b32 v2, 3, v0')
    a('v_lshl_add_u32 v1, v2, 4, v1')
    a('s_lshl_b32 s17, s2, 7')
    a('v_add_u32 v1, s17, v1')
    a('s_lshl_b32 s17, s2, 13')
    a('v_lshl_add_u32 v2, v0, 4, s17')
    a('s_waitcnt lgkmcnt(0)')
    a.stamp()
    a(f's_add_u32 s18, s4, {XNT}'); a('s_addc_u32 s19, s5, 0')
    a(f's_add_u32 s20, s4, {KP}'); a('s_addc_u32 s21, s5, 0')
    a('global_load_dwordx4 v[8:11], v1, s[18:19]')
    a('global_load_dwordx4 v[12:15], v1, s[18:19] offset:64')
    a('global_load_dwordx4 v[16:19], v2, s[20:21]')
    a('v_add_u32 v2, 4096, v2')
    a('global_load_dwordx4 v[20:23], v2, s[20:21]')
    a(f's_add_u32 s22, s3, {MOD}');        a('s_load_dwordx2 s[8:9], s[4:5], s22')
    a(f's_add_u32 s22, s3, {MOD+1792}');   a('s_load_dwordx2 s[10:11], s[4:5], s22')
    a(f's_add_u32 s22, s3, {MOD+3584}');   a('s_load_dwordx2 s[12:13], s[4:5], s22')
    a(f's_add_u32 s22, s3, {KSC}');        a('s_load_dwordx2 s[14:15], s[4:5], s22')
    a('s_load_dword s16, s[6:7], s16')
    for r in range(4): a(f'v_mov_b32 v{24+r}, 0')
    a('v_and_b32 v3, 31, v0')
    a('v_lshlrev_b32 v3, 4, v3')
    a('v_lshrrev_b32 v4, 5, v0')
    a('v_mul_u32_u24 v4, 4608, v4')
    a('v_add_u32 v3, v3, v4')
    a(f'v_add_u32 v3, {KB}, v3')
    a('v_and_b32 v4, 7, v0')
    a('v_mul_u32_u24 v5, 4352, v4')
    a('v_and_b32 v6, 3, v4')
    a('v_lshl_add_u32 v5, v6, 6, v5')
    a('v_lshrrev_b32 v6, 2, v4')
    a('v_lshl_add_u32 v5, v6, 5, v5')
    a('v_bfe_u32 v6, v0, 3, 1')
    a(f'v_mul_u32_u24 v6, {TCS}, v6')
    a('v_add_u32 v5, v5, v6')
    a('v_cmp_gt_u32 vcc, 64, v0')
    a('s_and_saveexec_b64 s[24:25], vcc')
    a('ds_write_b128 v3, v[24:27]')
    a('v_cmp_gt_u32 vcc, 16, v0')
    a('s_and_b64 exec, exec, vcc')
    a('ds_write_b128 v5, v[24:27] offset:4096')
    a('ds_write_b128 v5, v[24:27] offset:4112')
    a('s_mov_b64 exec, s[24:25]')
    a('v_lshlrev_b32 v3, 4, v0')
    a('v_sub_u32 v4, 4080, v3')
    a('s_waitcnt lgkmcnt(0)')
    a.stamp()
    for c in range(2):
        b = 28 + 4*c
        a(f'v_add_f32 v{b}, 1.0, s{10+c}')
        rnd_bf16(a, b, b)
        a(f'v_mov_b32 v{b+1}, s{8+c}')
        a(f'v_mul_f32 v5, {f32(32.0)}, v{b}')
        a(f'v_add_f32 v5, |v5|, |v{b+1}|')
        a('v_frexp_exp_i32_f32 v5, v5')
        a('v_mov_b32 v6, 100')
        a('v_min_i32 v5, v5, v6')
        a('v_sub_u32 v6, 0, v6')
        a('v_max_i32 v5, v5, v6')
        a('v_sub_u32 v6, 15, v5')
        a(f'v_ldexp_f32 v{b+2}, 1.0, v6')
        a('v_add_u32 v6, -15, v5')
        a(f'v_mov_b32 v7, s{14+c}')
        a(f'v_ldexp_f32 v{b+3}, v7, v6')
    a(f'v_add_u32 v5, {KB+512}, v3')
    for c in range(2):
        b = 28 + 4*c
        a(f's_waitcnt vmcnt({3-c})')
        src = 8 + 4*c
        for k in range(4):
            unpack2(a, 40+2*k, 41+2*k, src + k)
            a(f'v_mul_f32 v{40+2*k}, v{40+2*k}, v{b}')
            a(f'v_mul_f32 v{41+2*k}, v{41+2*k}, v{b}')
            a(f'v_cvt_pk_bf16_f32 v{48+k}, v{40+2*k}, v{41+2*k}')
            unpack2(a, 40+2*k, 41+2*k, 48 + k)
            a(f'v_add_f32 v{40+2*k}, v{40+2*k}, v{b+1}')
            a(f'v_add_f32 v{41+2*k}, v{41+2*k}, v{b+1}')
            a(f'v_cvt_pk_bf16_f32 v{48+k}, v{40+2*k}, v{41+2*k}')
            unpack2(a, 40+2*k, 41+2*k, 48 + k)
            a(f'v_mul_f32 v{40+2*k}, v{40+2*k}, v{b+2}')
            a(f'v_mul_f32 v{41+2*k}, v{41+2*k}, v{b+2}')
        for k in range(4):
            a(f'v_cvt_pk_f16_f32 v{52+k}, v{47-2*k}, v{46-2*k}')
        a(f'ds_write_b128 v4, v[52:55] offset:{TCS*c}')
    a('s_waitcnt vmcnt(0)')
    a('ds_write_b128 v5, v[16:19]')
    a('ds_write_b128 v5, v[20:23] offset:4608')
    a('s_waitcnt lgkmcnt(0)')
    a.stamp()
    a('s_barrier')
    for c in range(2):
        a(f'ds_read_b128 v[{40+8*c}:{43+8*c}], v3 offset:{TCS*c}')
        a(f'ds_read_b128 v[{44+8*c}:{47+8*c}], v3 offset:{TCS*c+16}')
    a('v_and_b32 v8, 15, v0')
    a('v_bfe_u32 v9, v0, 4, 2')
    a('v_lshrrev_b32 v10, 6, v0')
    a('v_readfirstlane_b32 s26, v10')
    a('s_lshr_b32 s27, s26, 1')
    a('s_and_b32 s28, s26, 1')
    a('v_and_b32 v11, 7, v8')
    a('v_sub_u32 v11, 7, v11')
    a('v_mul_u32_u24 v12, 4352, v11')
    a('v_and_b32 v13, 3, v11')
    a('v_lshl_add_u32 v12, v13, 6, v12')
    a('v_lshrrev_b32 v13, 2, v11')
    a('v_lshl_add_u32 v12, v13, 5, v12')
    a('v_and_b32 v13, 1, v9')
    a('v_lshrrev_b32 v14, 1, v9')
    a('v_lshlrev_b32 v14, 1, v14')
    a('v_sub_u32 v13, v13, v14')
    a('v_lshrrev_b32 v14, 3, v8')
    a('v_sub_u32 v14, v13, v14')
    a('v_add_u32 v14, 19, v14')
    a('v_lshl_add_u32 v12, v14, 4, v12')
    a(f's_mul_i32 s29, s27, {TCS}')
    a('s_lshl_b32 s30, s28, 8')
    a('s_sub_u32 s29, s29, s30')
    a('v_add_u32 v12, s29, v12')
    a('v_lshlrev_b32 v14, 5, v8')
    a('v_lshl_add_u32 v13, v13, 4, v14')
    a('s_mul_i32 s29, s27, 4608')
    a(f's_add_u32 s29, s29, {KB+512-192}')
    a('s_sub_u32 s29, s29, s30')
    a('v_add_u32 v13, s29, v13')
    for c in range(2):
        D = 40 + 8*c
        a(f's_waitcnt lgkmcnt({2-2*c})')
        P, O, O2 = 56, 62, 68
        for i in range(6): a(f'v_mov_b32 v{P+i}, v{D+1+i}')
        for i in range(6): a(f'v_alignbit_b32 v{O+i}, v{D+i+1}, v{D+i}, 16')
        for i in range(6): a(f'v_alignbit_b32 v{O2+i}, v{D+i+2}, v{D+i+1}, 16')
        src = {1: O, 2: P, 3: O2, 4: D+2, 5: O+2, 6: P+2, 7: O2+2}
        for sg in range(1, 8):
            a(f'ds_write_b128 v3, v[{src[sg]}:{src[sg]+3}] offset:{TCS*c + tbase(sg)}')
    ACC = 16
    for r in range(32): a(f'v_mov_b32 v{ACC+r}, 0') if False else None
    a('s_waitcnt lgkmcnt(0)')
    a.stamp()
    a('s_barrier')
    a.stamp()
    a('s_cmp_eq_u32 s27, 0')
    a('s_cselect_b64 s[30:31], -1, 0')
    a('v_cndmask_b32 v7, v35, v31, s[30:31]')
    a('v_cndmask_b32 v6, v34, v30, s[30:31]')
    a('v_rcp_f32 v6, v6')
    for r in range(32): a(f'v_mov_b32 v{ACC+r}, 0')
    SETS = (48, 112)
    def reads(ci, base):
        for p in range(8):
            a(f'ds_read_b128 v[{base+4*p}:{base+4*p+3}], v12 offset:{512*(7-p)+32*(6-2*ci)}')
            a(f'ds_read_b128 v[{base+32+4*p}:{base+35+4*p}], v13 offset:{512*p+32*(6-2*ci)}')
    order = sorted([(p, q) for p in range(8) for q in range(8) if p + q <= 7], key=lambda t: (max(t), t))
    reads(0, SETS[0])
    for ci in range(4):
        base = SETS[ci & 1]
        a('s_waitcnt lgkmcnt(0)')
        if ci < 3: reads(ci + 1, SETS[(ci + 1) & 1])
        for (p, q) in order:
            t = ACC + 4*(p + q)
            a(f'v_mfma_f32_16x16x32_f16 v[{t}:{t+3}], v[{base+4*p}:{base+4*p+3}], v[{base+32+4*q}:{base+35+4*q}], v[{t}:{t+3}]')
    a.stamp()
    a('v_and_b32 v1, 63, v0')
    a('v_lshlrev_b32 v1, 4, v1')
    a(f's_mul_i32 s29, s27, {TCS}')
    a('s_lshl_b32 s30, s28, 12')
    a(f's_add_u32 s31, s29, {RED}')
    a('s_add_u32 s30, s30, s31')
    a('v_add_u32 v2, s30, v1')
    a('s_xor_b32 s31, s28, 1')
    a('s_lshl_b32 s31, s31, 12')
    a('s_add_u32 s31, s31, s29')
    a(f's_add_u32 s31, s31, {RED}')
    a('v_add_u32 v3, s31, v1')
    a('v_lshlrev_b32 v4, 5, v8')
    a('v_lshl_add_u32 v4, v9, 3, v4')
    a('s_lshl_b32 s30, s28, 11')
    a('v_add_u32 v4, s30, v4')
    a(f's_add_u32 s29, s29, {4088-1536}')
    a('v_sub_u32 v5, s29, v4')
    a('s_lshl_b32 s29, s27, 12')
    a('s_lshl_b32 s30, s2, 13')
    a('s_add_u32 s30, s30, s29')
    a('v_add_u32 v4, s30, v4')
    for i in range(4): a(f'ds_read_b64 v[{48+2*i}:{49+2*i}], v5 offset:{512*(3-i)}')
    a('s_barrier')
    a('s_cmp_eq_u32 s28, 0')
    a('s_cbranch_scc0 K2_H1')
    for i in range(4): a(f'ds_write_b128 v2, v[{ACC+16+4*i}:{ACC+19+4*i}] offset:{1024*i}')
    a('s_waitcnt lgkmcnt(0)')
    a('s_barrier')
    for i in range(4): a(f'ds_read_b128 v[{64+4*i}:{67+4*i}], v3 offset:{1024*i}')
    a('s_waitcnt lgkmcnt(0)')
    for r in range(16): a(f'v_add_f32 v{64+r}, v{64+r}, v{ACC+r}')
    a('s_branch K2_EPI')
    a.label('K2_H1')
    for i in range(4): a(f'ds_write_b128 v2, v[{ACC+4*i}:{ACC+3+4*i}] offset:{1024*i}')
    a('s_waitcnt lgkmcnt(0)')
    a('s_barrier')
    for i in range(4): a(f'ds_read_b128 v[{64+4*i}:{67+4*i}], v3 offset:{1024*i}')
    a('s_waitcnt lgkmcnt(0)')
    for r in range(16): a(f'v_add_f32 v{64+r}, v{64+r}, v{ACC+16+r}')
    a.label('K2_EPI')
    a.stamp()
    a('s_cmp_eq_u32 s27, 0')
    a('s_cselect_b32 s29, s12, s13')
    a('s_lshl_b32 s30, s16, 16')
    a('s_and_b32 s31, s16, 0xffff0000')
    a('s_cmp_eq_u32 s27, 0')
    a('s_cselect_b32 s30, s30, s31')
    a(f's_add_u32 s20, s4, {GT}'); a('s_addc_u32 s21, s5, 0')
    for i in range(4):
        for k in range(2):
            y0, y1 = 64 + 4*i + 2*k, 65 + 4*i + 2*k
            a(f'v_mul_f32 v{y0}, v{y0}, v7')
            a(f'v_mul_f32 v{y1}, v{y1}, v7')
            a(f'v_cvt_pk_bf16_f32 v10, v{y0}, v{y1}')
            unpack2(a, y0, y1, 10)
            a(f'v_cvt_f32_f16_sdwa v11, v{49+2*i-k} src0_sel:WORD_1')
            a(f'v_cvt_f32_f16 v12, v{49+2*i-k}')
            a('v_mul_f32 v11, v6, v11')
            a('v_mul_f32 v12, v6, v12')
            a('v_mul_f32 v11, s30, v11')
            a('v_mul_f32 v12, s30, v12')
            a('v_cvt_pk_bf16_f32 v10, v11, v12')
            unpack2(a, 11, 12, 10)
            a(f'v_add_f32 v{y0}, v{y0}, v11')
            a(f'v_add_f32 v{y1}, v{y1}, v12')
            a(f'v_cvt_pk_bf16_f32 v10, v{y0}, v{y1}')
            unpack2(a, y0, y1, 10)
            a(f'v_mul_f32 v{y0}, s29, v{y0}')
            a(f'v_mul_f32 v{y1}, s29, v{y1}')
            a(f'v_cvt_pk_bf16_f32 v{80+2*i+k}, v{y0}, v{y1}')
        a(f'global_store_dwordx2 v4, v[{80+2*i}:{81+2*i}], s[20:21] offset:{512*i}')
    a('s_waitcnt vmcnt(0)') if asmlib.STAMPS else None
    a.stamp_dump(1, 4)
    a('s_endpgm')
    a.label('K2_PACK')
    a.stamp(real=True); a.stamp()
    a('s_load_dwordx8 s[12:19], s[0:1], 80')
    a('s_load_dwordx2 s[20:21], s[0:1], 144')
    a('s_sub_u32 s3, s2, 224')
    a('s_waitcnt lgkmcnt(0)')
    a('s_mov_b32 s6, 896'); a('s_mov_b32 s10, 14336'); a('s_mov_b32 s11, -1')
    a('s_cmp_lt_u32 s3, 14')
    a('s_cbranch_scc0 K2_P34')
    a('s_cmp_lt_u32 s3, 7')
    a('s_cselect_b32 s4, s12, s14'); a('s_cselect_b32 s5, s13, s15')
    a(f's_mov_b32 s22, {W2P}')
    a(f's_cselect_b32 s22, {W1P}, s22')
    a(f's_cselect_b32 s11, {CS1}, -1')
    a('s_cselect_b32 s23, 0, 7')
    a('s_sub_u32 s23, s3, s23')
    a('s_mov_b32 s24, 0')
    a('s_branch K2_PGO')
    a.label('K2_P34')
    a('s_cmp_lt_u32 s3, 42')
    a('s_cbranch_scc0 K2_P4')
    a('s_mov_b32 s4, s16'); a('s_mov_b32 s5, s17'); a('s_mov_b32 s6, 3584')
    a(f's_mov_b32 s22, {W3P}'); a(f's_mov_b32 s11, {CS3}')
    a('s_sub_u32 s23, s3, 14'); a('s_mov_b32 s24, 0')
    a('s_branch K2_PGO')
    a.label('K2_P4')
    a('s_mov_b32 s4, s18'); a('s_mov_b32 s5, s19')
    a(f's_mov_b32 s22, {W4P}'); a('s_mov_b32 s10, 57344')
    a('s_sub_u32 s23, s3, 42')
    a('s_mul_i32 s24, s23, 37'); a('s_lshr_b32 s24, s24, 8')
    a('s_mul_i32 s25, s24, 7'); a('s_sub_u32 s23, s23, s25')
    a.label('K2_PGO')
    a(f's_mul_i32 s25, s24, {448*896}')
    a('s_lshl_b32 s26, s23, 7')
    a('s_add_u32 s25, s25, s26')
    a('s_add_u32 s4, s4, s25'); a('s_addc_u32 s5, s5, 0')
    a('s_lshl_b32 s25, s23, 2'); a('s_mul_i32 s25, s25, s10')
    a('s_mul_i32 s26, s24, 14336'); a('s_add_u32 s25, s25, s26'); a('s_add_u32 s25, s25, s22')
    a('s_add_u32 s8, s20, s25'); a('s_addc_u32 s9, s21, 0')
    a('v_lshrrev_b32 v1, 3, v0')
    a('v_and_b32 v2, 7, v0')
    a('v_mul_lo_u32 v3, v1, s6')
    a('v_lshl_add_u32 v3, v2, 4, v3')
    a('s_lshl_b32 s25, s6, 5')
    for i in range(14):
        if i: a('v_add_u32 v3, s25, v3')
        a(f'global_load_dwordx4 v[{16+4*i}:{19+4*i}], v3, s[4:5]')
    a('v_bfe_u32 v4, v1, 1, 1')
    a('v_bfe_u32 v5, v1, 3, 1')
    a('v_lshlrev_b32 v4, 2, v4')
    a('v_lshl_or_b32 v4, v5, 1, v4')
    a('v_xor_b32 v4, v4, v2')
    a('v_lshlrev_b32 v4, 4, v4')
    a('v_lshl_add_u32 v4, v1, 7, v4')
    a('v_mov_b32 v76, 0x05040100')
    a('v_mov_b32 v77, 0x07060302')
    a('v_cmp_eq_u32 vcc, 1, v5')
    a('v_cndmask_b32 v78, v76, v77, vcc')
    a('v_cndmask_b32 v79, v77, v76, vcc')
    a('v_and_b32 v5, 15, v0'); a('v_bfe_u32 v6, v0, 4, 2'); a('v_lshrrev_b32 v7, 6, v0')
    a('v_lshrrev_b32 v8, 2, v5')
    a('v_lshl_add_u32 v8, v6, 3, v8')
    a('v_and_b32 v9, 3, v5')
    a('v_lshrrev_b32 v10, 1, v7')
    a('v_lshl_add_u32 v10, v10, 2, v9')
    a('v_and_b32 v11, 1, v7')
    a('v_and_b32 v12, 1, v9')
    a('v_lshl_add_u32 v12, v7, 1, v12')
    a('v_lshrrev_b32 v13, 1, v9')
    a('s_cmp_eq_u32 s11, -1')
    a('s_cselect_b64 s[26:27], -1, 0')
    a('v_cndmask_b32 v10, v10, v12, s[26:27]')
    a('v_cndmask_b32 v11, v11, v13, s[26:27]')
    a('v_bfe_u32 v12, v8, 1, 1'); a('v_bfe_u32 v13, v8, 3, 1')
    a('v_lshlrev_b32 v12, 2, v12')
    a('v_lshl_or_b32 v12, v13, 1, v12')
    a('v_xor_b32 v10, v10, v12')
    a('v_xor_b32 v11, v11, v13')
    a('v_lshlrev_b32 v9, 7, v8')
    a('v_lshl_add_u32 v9, v10, 4, v9')
    a('v_lshl_add_u32 v9, v11, 3, v9')
    a('v_mul_lo_u32 v10, v7, s10')
    a('v_and_b32 v11, 63, v0')
    a('v_lshl_add_u32 v10, v11, 4, v10')
    for r in range(4): a(f'v_mov_b32 v{12+r}, 0x3f803f80')
    for r in range(4): a(f'v_mov_b32 v{72+r}, 0')
    for i in range(14):
        a(f's_waitcnt vmcnt({13-i})')
        b = 16 + 4*i; t = 80 + 4*(i & 1)
        a(f'v_perm_b32 v{t}, v{b+1}, v{b}, v78')
        a(f'v_perm_b32 v{t+1}, v{b+3}, v{b+2}, v78')
        a(f'v_perm_b32 v{t+2}, v{b+1}, v{b}, v79')
        a(f'v_perm_b32 v{t+3}, v{b+3}, v{b+2}, v79')
        a(f'ds_write_b128 v4, v[{t}:{t+3}] offset:{4096*i}')
    a('s_waitcnt lgkmcnt(0)')
    a.stamp()
    a('s_barrier')
    for s in range(14):
        a(f'ds_read_b64_tr_b16 v[{16+4*s}:{17+4*s}], v9 offset:{4096*s}')
        a(f'ds_read_b64_tr_b16 v[{18+4*s}:{19+4*s}], v9 offset:{4096*s+512}')
        if s >= 6:
            s1 = s - 6
            a('s_waitcnt lgkmcnt(12)')
            a(f'global_store_dwordx4 v10, v[{16+4*s1}:{19+4*s1}], s[8:9] offset:{1024*(s1&3)}')
            a(f'v_mfma_f32_16x16x32_bf16 v[72:75], v[12:15], v[{16+4*s1}:{19+4*s1}], v[72:75]')
            if (s1 & 3) == 3: a('v_add_u32 v10, 4096, v10')
    for s1 in range(8, 14):
        a(f's_waitcnt lgkmcnt({2*(13-s1)})')
        a(f'global_store_dwordx4 v10, v[{16+4*s1}:{19+4*s1}], s[8:9] offset:{1024*(s1&3)}')
        a(f'v_mfma_f32_16x16x32_bf16 v[72:75], v[12:15], v[{16+4*s1}:{19+4*s1}], v[72:75]')
        if (s1 & 3) == 3: a('v_add_u32 v10, 4096, v10')
    if asmlib.STAMPS:
        a('s_waitcnt vmcnt(0)'); a.stamp(); a.stamp(); a.stamp(); a.stamp(); a.stamp(); a.stamp()
        a.stamp_dump(1, 20)
    a('s_cmp_eq_u32 s11, -1')
    a('s_cbranch_scc1 K2_END')
    a('v_cmp_gt_u32 vcc, 16, v11')
    a('s_and_saveexec_b64 s[26:27], vcc')
    a('s_lshl_b32 s25, s23, 8')
    a('s_add_u32 s25, s25, s11')
    a('v_lshrrev_b32 v6, 1, v7')
    a('v_lshl_add_u32 v5, v6, 4, v5')
    a('v_and_b32 v6, 1, v7')
    a('v_lshl_add_u32 v5, v5, 1, v6')
    a('v_lshl_add_u32 v5, v5, 2, s25')
    a('global_store_dword v5, v72, s[20:21]')
    a.label('K2_END')
    a('s_endpgm')
    kernel('conv_kernel', (294, 1, 1), (256, 1, 1), 78848, 176, 40, a)

def gen_all(G):
    gen_k2(G)
    try:
        import gen3
        gen3.gen_all(G)
    except ImportError:
        pass
```

```python
import math, asmlib
from asmlib import Asm
from layout import *
LOG2E = 1.4426950408889634
GC0 = -2 * LOG2E * math.sqrt(2 / math.pi)
GC1 = GC0 * 0.044715

def gelu_pair(G, a, x0, x1, t0, t1, sc0, dst):
    f32 = G.f32
    a(f'v_cvt_pk_bf16_f32 v{t0}, v{x0}, v{x1}')
    G.unpack2(a, x0, x1, t0)
    a(f'v_mul_f32 v{t0}, v{x0}, v{x0}')
    a(f'v_mul_f32 v{t1}, v{x1}, v{x1}')
    a(f'v_fmaak_f32 v{t0}, {f32(GC1)}, v{t0}, {f32(GC0)}') if False else None
    a(f'v_mul_f32 v{t0}, {f32(GC1)}, v{t0}')
    a(f'v_mul_f32 v{t1}, {f32(GC1)}, v{t1}')
    a(f'v_add_f32 v{t0}, s{sc0}, v{t0}')
    a(f'v_add_f32 v{t1}, s{sc0}, v{t1}')
    a(f'v_mul_f32 v{t0}, v{t0}, v{x0}')
    a(f'v_mul_f32 v{t1}, v{t1}, v{x1}')
    a(f'v_exp_f32 v{t0}, v{t0}')
    a(f'v_exp_f32 v{t1}, v{t1}')
    a(f'v_add_f32 v{t0}, 1.0, v{t0}')
    a(f'v_add_f32 v{t1}, 1.0, v{t1}')
    a(f'v_rcp_f32 v{t0}, v{t0}')
    a(f'v_rcp_f32 v{t1}, v{t1}')
    a(f'v_mul_f32 v{x0}, v{x0}, v{t0}')
    a(f'v_mul_f32 v{x1}, v{x1}, v{t1}')
    a(f'v_cvt_pk_bf16_f32 v{dst}, v{x0}, v{x1}')

def stats_from_partials(G, a, base, n, mb, rinv, t):
    for k in range(1, n):
        a(f'v_add_f32 v{base}, v{base}, v{base+2*k}')
        a(f'v_add_f32 v{base+1}, v{base+1}, v{base+2*k+1}')
    a(f'v_mul_f32 v{base}, {G.f32(1.0/448)}, v{base}')
    a(f'v_mul_f32 v{base+1}, {G.f32(1.0/448)}, v{base+1}')
    a(f'v_fma_f32 v{base+1}, -v{base}, v{base}, v{base+1}')
    a(f'v_max_f32 v{base+1}, 0, v{base+1}')
    G.ln_scalars(a, base, base + 1, mb, rinv, t)

def gen_k3(G):
    f32, srd, rnd_bf16, unpack2, kernel = G.f32, G.srd, G.rnd_bf16, G.unpack2, G.kernel
    a = Asm()
    XL = 17920; AT = 35840; ST2 = 52224; ST3 = 53248; SCR = 54272; LDSZ = 54272 + 1024
    a('s_cmp_ge_u32 s2, 256')
    a('s_cbranch_scc1 K3_END')
    a.stamp(real=True); a.stamp()
    a('s_load_dwordx2 s[4:5], s[0:1], 144')
    a('s_load_dwordx2 s[6:7], s[0:1], 0')
    a('s_and_b32 s3, s2, 7'); a('s_lshl_b32 s3, s3, 4'); a('s_lshr_b32 s8, s2, 4'); a('s_add_u32 s3, s3, s8')
    a('s_bfe_u32 s8, s2, 0x10003')
    a('v_lshrrev_b32 v1, 6, v0')
    a('v_readfirstlane_b32 s9, v1')
    a('s_and_b32 s10, s9, 3')
    a('s_lshr_b32 s11, s9, 2')
    a('v_and_b32 v2, 3, v0')
    a('v_bfe_u32 v3, v0, 2, 2')
    a('v_bfe_u32 v4, v0, 4, 2')
    a('v_and_b32 v5, 15, v0')
    a('v_lshrrev_b32 v6, 1, v0')
    a('v_and_b32 v7, 1, v0')
    a('v_lshlrev_b32 v8, 12, v6')
    a('v_lshl_add_u32 v8, v7, 4, v8')
    a('s_lshl_b32 s12, s3, 5')
    a('v_add_u32 v8, s12, v8')
    a('v_add_u32 v9, 0x100000, v8')
    a('v_mul_u32_u24 v10, 40, v6')
    a('v_lshl_add_u32 v10, v7, 4, v10')
    a('s_mul_i32 s13, s3, 14336')
    a('v_lshl_add_u32 v12, v0, 4, s13')
    a('v_add_u32 v13, 8192, v12')
    for (d, add) in ((80, 0), (81, 512)):
        a(f'v_add_u32 v14, {add}, v0')
        a('v_mul_u32_u24 v15, 1171, v14')
        a('v_lshrrev_b32 v15, 16, v15')
        a(f'v_mul_u32_u24 v15, {1088-896}, v15')
        a(f'v_lshl_add_u32 v{d}, v14, 4, v15')
    a('v_lshlrev_b32 v11, 6, v4')
    a('v_lshl_add_u32 v11, v3, 4, v11')
    a('s_lshl_b32 s12, s11, 10')
    a('v_add_u32 v11, s12, v11')
    a('s_waitcnt lgkmcnt(0)')
    a.stamp()
    srd(a, 16, 4, 5, GT, ACT_BYTES)
    srd(a, 24, 6, 7, 0, ACT_BYTES)
    a('v_cmp_gt_u32 vcc, 384, v0')
    a('s_mov_b64 s[30:31], vcc')
    a('v_mov_b32 v14, 0x80000000')
    a('v_cndmask_b32 v13, v14, v13, s[30:31]')
    a('buffer_load_dwordx4 v[16:19], v8, s[16:19], 0 offen')
    a('buffer_load_dwordx4 v[20:23], v9, s[16:19], 0 offen')
    a('buffer_load_dwordx4 v[24:27], v12, s[24:27], 0 offen')
    a('buffer_load_dwordx4 v[28:31], v13, s[24:27], 0 offen')
    X, GG, CB, SB = 84, 32, 40, 56
    a(f's_add_u32 s14, s4, {MOD+3*1792}'); a('s_addc_u32 s15, s5, 0')
    for i in range(3):
        a(f'global_load_dwordx4 v[{SB+4*i}:{SB+4*i+3}], v11, s[14:15] offset:{256*i}')
        a(f'global_load_dwordx4 v[{CB+4*i}:{CB+4*i+3}], v11, s[14:15] offset:{1792+256*i}')
    a('s_cmp_eq_u32 s11, 1')
    a('s_cbranch_scc1 K3_L1')
    a(f'global_load_dwordx4 v[{SB+12}:{SB+15}], v11, s[14:15] offset:768')
    a(f'global_load_dwordx4 v[{CB+12}:{CB+15}], v11, s[14:15] offset:{1792+768}')
    a.label('K3_L1')
    W = 96; CSR = 72
    a('s_mul_i32 s12, s8, 14'); a('s_lshl_b32 s13, s9, 1'); a('s_add_u32 s12, s12, s13')
    a('s_lshl_b32 s13, s12, 6')
    a('v_lshl_add_u32 v14, v5, 3, s13')
    a(f's_add_u32 s20, s4, {CS1}'); a('s_addc_u32 s21, s5, 0')
    a('s_mul_i32 s13, s12, 14336')
    a('v_and_b32 v15, 63, v0')
    a('v_lshl_add_u32 v15, v15, 4, s13')
    a(f's_add_u32 s22, s4, {W1P}'); a('s_addc_u32 s23, s5, 0')
    a('s_barrier')
    a('s_cmp_eq_u32 s9, 7')
    a('s_cbranch_scc1 K3_L2')
    a(f'global_load_dwordx2 v[{CSR}:{CSR+1}], v14, s[20:21]')
    for k in range(28):
        if k and k % 4 == 0: a('v_add_u32 v15, 4096, v15')
        a(f'global_load_dwordx4 v[{W+4*k}:{W+4*k+3}], v15, s[22:23] offset:{1024*(k&3)}')
    a('s_waitcnt vmcnt(29)')
    a('s_branch K3_L3')
    a.label('K3_L2')
    a('s_waitcnt vmcnt(0)')
    a.label('K3_L3')
    a.stamp()
    a('ds_write_b64 v10, v[16:17]')
    a('ds_write_b64 v10, v[18:19] offset:8')
    a(f'ds_write_b128 v80, v[24:27] offset:{XL}')
    a('s_and_saveexec_b64 s[22:23], s[30:31]')
    a('ds_write_b64 v10, v[20:21] offset:10240')
    a('ds_write_b64 v10, v[22:23] offset:10248')
    a(f'ds_write_b128 v81, v[28:31] offset:{XL}')
    a('s_mov_b64 exec, s[22:23]')
    a('v_lshlrev_b32 v6, 4, v4')
    a('v_lshl_add_u32 v6, v2, 2, v6')
    a('v_add_u32 v6, v6, v3')
    a('s_lshl_b32 s12, s11, 8')
    a('v_add_u32 v6, s12, v6')
    a('v_mul_u32_u24 v6, 40, v6')
    a('s_lshl_b32 s12, s10, 3')
    a('v_add_u32 v6, s12, v6')
    a('s_lshl_b32 s12, s10, 2')
    a('v_add_u32 v12, s12, v2')
    a('v_mul_u32_u24 v8, 1088, v12')
    a('v_lshrrev_b32 v9, 1, v11')
    a('v_add_u32 v8, v8, v9')
    for r in range(16): a(f'v_add_f32 v{CB+r}, 1.0, v{CB+r}')
    for q in range(8): a(f'v_cvt_pk_bf16_f32 v{16+q}, v{CB+2*q}, v{CB+2*q+1}')
    for q in range(8): unpack2(a, CB+2*q, CB+2*q+1, 16+q)
    a('v_mov_b32 v15, 0x3f803f80')
    a('v_lshlrev_b32 v10, 6, v12')
    a('s_lshl_b32 s12, s11, 5')
    a('v_lshl_add_u32 v7, v4, 3, s12')
    a('v_add_u32 v7, v7, v10')
    a('v_lshrrev_b32 v13, 1, v3')
    a('v_lshl_add_u32 v13, v4, 1, v13')
    a('v_xor_b32 v13, v13, v12')
    a('v_lshlrev_b32 v13, 4, v13')
    a('v_lshl_add_u32 v13, v12, 10, v13')
    a('v_and_b32 v14, 1, v3')
    a('v_lshl_add_u32 v13, v14, 3, v13')
    a('s_lshl_b32 s12, s11, 9')
    a(f's_add_u32 s12, s12, {AT}')
    a('v_add_u32 v13, s12, v13')
    a('v_xor_b32 v14, 128, v13')
    a('v_cmp_gt_u32 s[28:29], 4, v5')
    a('s_waitcnt lgkmcnt(0)')
    a('s_barrier')
    a.stamp()
    for i in range(4):
        a(f'ds_read_b64_tr_b16 v[{GG+2*i}:{GG+2*i+1}], v6 offset:{2560*i}')
        a(f'ds_read_b64 v[{X+2*i}:{X+2*i+1}], v8 offset:{XL+128*i}')
    a('s_waitcnt lgkmcnt(0)')
    a('s_cmp_eq_u32 s11, 1')
    a('s_cbranch_scc0 K3_L4')
    for r in (GG+6, GG+7, X+6, X+7): a(f'v_mov_b32 v{r}, 0')
    a.label('K3_L4')
    T = 208
    Q = range(8)
    for q in Q: unpack2(a, T+2*q, T+2*q+1, X+q); unpack2(a, T+16+2*q, T+17+2*q, GG+q)
    for q in Q: a(f'v_add_f32 v{T+2*q}, v{T+2*q}, v{T+16+2*q}'); a(f'v_add_f32 v{T+2*q+1}, v{T+2*q+1}, v{T+17+2*q}')
    for q in Q: a(f'v_cvt_pk_bf16_f32 v{X+q}, v{T+2*q}, v{T+2*q+1}')
    def stats(src):
        a(f'v_dot2_f32_bf16 v80, v{src}, v15, 0')
        a(f'v_dot2_f32_bf16 v81, v{src}, v{src}, 0')
        for q in range(1, 8):
            a(f'v_dot2_f32_bf16 v80, v{src+q}, v15, v80')
            a(f'v_dot2_f32_bf16 v81, v{src+q}, v{src+q}, v81')
    def exch_write(st):
        for ro in (4, 8):
            for r in (80, 81): a(f'v_add_f32_dpp v{r}, v{r}, v{r} row_ror:{ro} row_mask:0xf bank_mask:0xf')
        a('s_and_saveexec_b64 s[22:23], s[28:29]')
        a(f'ds_write_b64 v7, v[80:81] offset:{st}')
        a('s_mov_b64 exec, s[22:23]')
    stats(X)
    for i in range(3): a(f'ds_write_b64 v8, v[{X+2*i}:{X+2*i+1}] offset:{XL+128*i}')
    a('s_cbranch_scc1 K3_L5')
    a(f'ds_write_b64 v8, v[{X+6}:{X+7}] offset:{XL+384}')
    a.label('K3_L5')
    exch_write(ST2)
    for q in Q: unpack2(a, T+2*q, T+2*q+1, X+q)
    a('s_waitcnt lgkmcnt(0)')
    a('s_barrier')
    a.stamp()
    for k in range(4): a(f'ds_read_b128 v[{16+4*k}:{19+4*k}], v10 offset:{ST2+16*k}')
    a('s_waitcnt lgkmcnt(0)')
    stats_from_partials(G, a, 16, 8, 82, 83, 92)
    for r in range(16): a(f'v_sub_f32 v{T+r}, v{T+r}, v82')
    for q in Q: a(f'v_cvt_pk_bf16_f32 v{16+q}, v{T+2*q}, v{T+2*q+1}')
    for q in Q: unpack2(a, T+2*q, T+2*q+1, 16+q)
    for r in range(16): a(f'v_mul_f32 v{T+r}, v{T+r}, v83')
    for q in Q: a(f'v_cvt_pk_bf16_f32 v{16+q}, v{T+2*q}, v{T+2*q+1}')
    for q in Q: unpack2(a, T+2*q, T+2*q+1, 16+q)
    for r in range(16): a(f'v_mul_f32 v{T+r}, v{T+r}, v{CB+r}')
    for q in Q: a(f'v_cvt_pk_bf16_f32 v{16+q}, v{T+2*q}, v{T+2*q+1}')
    for q in Q: unpack2(a, T+2*q, T+2*q+1, 16+q)
    for r in range(16): a(f'v_add_f32 v{T+r}, v{T+r}, v{SB+r}')
    for q in Q: a(f'v_cvt_pk_bf16_f32 v{GG+q}, v{T+2*q}, v{T+2*q+1}')
    for i in range(3): a(f'ds_write_b64 v{13 + (i&1)}, v[{GG+2*i}:{GG+2*i+1}] offset:{256*(i>>1)}')
    a('s_cmp_eq_u32 s11, 1')
    a('s_cbranch_scc1 K3_L6')
    a(f'ds_write_b64 v14, v[{GG+6}:{GG+7}] offset:256')
    a('s_branch K3_L7')
    a.label('K3_L6')
    a(f'v_mov_b32 v{GG+6}, 0'); a(f'v_mov_b32 v{GG+7}, 0')
    a.label('K3_L7')
    stats(GG)
    exch_write(ST3)
    a('v_xor_b32 v6, v4, v5')
    a('v_lshlrev_b32 v7, 10, v5')
    a(f'v_add_u32 v7, {AT}, v7')
    for u in range(4):
        a(f'v_xor_b32 v{8+u}, {4*u}, v6')
        a(f'v_lshl_add_u32 v{8+u}, v{8+u}, 4, v7')
    a('v_lshlrev_b32 v12, 6, v5')
    a('s_lshl_b32 s12, s9, 7')
    a(f's_add_u32 s12, s12, {SCR}')
    a('v_lshl_add_u32 v13, v5, 3, s12')
    a('v_lshl_add_u32 v14, v4, 5, s12')
    a('s_waitcnt lgkmcnt(0)')
    a('s_barrier')
    a.stamp()
    a('s_cmp_eq_u32 s9, 7')
    a('s_cbranch_scc1 K3_COPY')
    for k in range(4): a(f'ds_read_b128 v[{208+4*k}:{211+4*k}], v12 offset:{ST3+16*k}')
    AF = 16
    for s in range(11): a(f'ds_read_b128 v[{AF+4*s}:{AF+4*s+3}], v{8+(s&3)} offset:{256*(s>>2)}')
    a('s_waitcnt lgkmcnt(11)')
    stats_from_partials(G, a, 208, 8, 82, 83, 92)
    a('v_sub_f32 v82, 0, v82')
    a('ds_write_b64 v13, v[82:83]')
    for s in range(11, 14): a(f'ds_read_b128 v[{AF+4*s}:{AF+4*s+3}], v{8+(s&3)} offset:{256*(s>>2)}')
    a('ds_read_b128 v[208:211], v14')
    a('ds_read_b128 v[212:215], v14 offset:16')
    ACC = 84
    a('s_lshl_b32 s13, s3, 4')
    a('v_lshl_add_u32 v6, v4, 2, s13')
    a('v_mul_u32_u24 v6, 896, v6')
    a('v_lshl_add_u32 v6, v5, 2, v6')
    a('s_mul_i32 s12, s8, 14'); a('s_lshl_b32 s13, s9, 1'); a('s_add_u32 s12, s12, s13'); a('s_lshl_b32 s12, s12, 5')
    a('v_add_u32 v6, s12, v6')
    a(f's_add_u32 s20, s4, {HH}'); a('s_addc_u32 s21, s5, 0')
    a(f's_mov_b32 s12, {f32(GC0)}')
    a('s_waitcnt vmcnt(28) lgkmcnt(0)')
    for jj in range(2):
        for r in range(4): a(f'v_mul_f32 v{ACC+4*jj+r}, v{208+2*r}, v{CSR+jj}')
    a.stamp()
    for s in range(14):
        a(f's_waitcnt vmcnt({13-s})')
        for jj in range(2):
            w = W + 4*(14*jj + s)
            a(f'v_mfma_f32_16x16x32_bf16 v[{ACC+4*jj}:{ACC+4*jj+3}], v[{AF+4*s}:{AF+4*s+3}], v[{w}:{w+3}], v[{ACC+4*jj}:{ACC+4*jj+3}]')
    a.stamp()
    for r in range(4):
        x0 = ACC + r; x1 = ACC + 4 + r
        a(f'v_mul_f32 v{x0}, v{x0}, v{209+2*r}'); a(f'v_mul_f32 v{x1}, v{x1}, v{209+2*r}')
        gelu_pair(G, a, x0, x1, 16 + 2*r, 17 + 2*r, 12, 92 + r)
        a(f'global_store_dword v6, v{92+r}, s[20:21] offset:{896*r}')
    a('s_waitcnt vmcnt(0)') if asmlib.STAMPS else None
    a.stamp_dump(2, 4)
    a('s_endpgm')
    a.label('K3_COPY')
    a('v_and_b32 v1, 63, v0')
    a('s_mul_i32 s12, s8, 28')
    a('s_mul_i32 s13, s3, 14336')
    a(f's_add_u32 s20, s4, {X1}'); a('s_addc_u32 s21, s5, 0')
    a(f's_add_u32 s22, s4, {H2}'); a('s_addc_u32 s23, s5, 0')
    for it in range(7):
        b = 16 + 8*it
        a(f'v_add_u32 v2, {64*it}, v1')
        a('v_mul_u32_u24 v3, 2341, v2')
        a('v_lshrrev_b32 v3, 16, v3')
        a('v_mul_u32_u24 v4, 28, v3')
        a('v_sub_u32 v4, v2, v4')
        a('v_add_u32 v4, s12, v4')
        a('v_mul_u32_u24 v5, 1088, v3')
        a('v_lshl_add_u32 v5, v4, 4, v5')
        a(f'ds_read_b128 v[{b}:{b+3}], v5 offset:{XL}')
        a('v_xor_b32 v6, v4, v3')
        a('v_lshlrev_b32 v6, 4, v6')
        a('v_lshl_add_u32 v6, v3, 10, v6')
        a(f'ds_read_b128 v[{b+4}:{b+7}], v6 offset:{AT}')
        a('v_mul_u32_u24 v7, 896, v3')
        a('v_lshl_add_u32 v7, v4, 4, v7')
        a(f'v_add_u32 v{80+it}, s13, v7')
    for it in range(7):
        b = 16 + 8*it
        a(f's_waitcnt lgkmcnt({12-2*it})')
        a(f'global_store_dwordx4 v{80+it}, v[{b}:{b+3}], s[20:21]')
        a(f'global_store_dwordx4 v{80+it}, v[{b+4}:{b+7}], s[22:23]')
    a.label('K3_END')
    a('s_endpgm')
    kernel('ln_gemm1_kernel', (256, 1, 1), (512, 1, 1), LDSZ, 240, 40, a)

def gen_all(G):
    gen_k3(G)
    import gen4
    gen4.gen_all(G)
```

```python
import asmlib
from asmlib import Asm
from layout import *
from gen3 import gelu_pair, stats_from_partials, GC0

def exch8(a, acc, lo, hi, t, mask):
    for k in range(2):
        a(f'v_cndmask_b32 v{t+k}, v{acc+k}, v{acc+2+k}, {mask}')
    for k in range(2):
        a(f'v_mov_b32_dpp v{t+2+k}, v{t+k} row_ror:8 row_mask:0xf bank_mask:0xf')
    for k in range(2):
        a(f'v_cndmask_b32 v{lo+2*k}, v{t+2+k}, v{acc+k}, {mask}')
        a(f'v_cndmask_b32 v{lo+2*k+1}, v{acc+2+k}, v{t+2+k}, {mask}')

def dma_lane(a, row, gsw, lane, t):
    a(f'v_lshrrev_b32 v{row}, 2, v{lane}')
    a(f'v_lshrrev_b32 v{t}, 4, v{lane}')
    a(f'v_sub_u32 v{t}, 0, v{t}')
    a(f'v_xor_b32 v{gsw}, v{t}, v{lane}')
    a(f'v_and_b32 v{gsw}, 3, v{gsw}')

def frag_rd_addr(a, d, tok, g, t):
    a(f'v_lshrrev_b32 v{t}, 2, v{tok}')
    a(f'v_sub_u32 v{t}, 0, v{t}')
    a(f'v_xor_b32 v{t}, v{t}, v{g}')
    a(f'v_and_b32 v{t}, 3, v{t}')
    a(f'v_lshlrev_b32 v{t}, 4, v{t}')
    a(f'v_lshl_add_u32 v{d}, v{tok}, 6, v{t}')

def gen_k4(G):
    f32, srd, rnd_bf16, unpack2, kernel = G.f32, G.srd, G.rnd_bf16, G.unpack2, G.kernel
    a = Asm()
    ST = 32768; LDSZ = 32768 + 2048
    a('s_cmp_ge_u32 s2, 256')
    a('s_cbranch_scc1 K4_END')
    a.stamp(real=True); a.stamp()
    a('s_load_dwordx2 s[4:5], s[0:1], 144')
    a('s_and_b32 s3, s2, 7'); a('s_lshl_b32 s3, s3, 3'); a('s_lshr_b32 s8, s2, 5'); a('s_add_u32 s3, s3, s8')
    a('s_bfe_u32 s8, s2, 0x20003')
    a('s_lshl_b32 s3, s3, 5')
    a('v_lshrrev_b32 v1, 6, v0')
    a('v_readfirstlane_b32 s9, v1')
    a('v_mul_u32_u24 v2, 1171, v0')
    a('v_lshrrev_b32 v2, 16, v2')
    a('v_mul_u32_u24 v3, 56, v2')
    a('v_sub_u32 v3, v0, v3')
    a('v_mul_u32_u24 v4, 4682, v3')
    a('v_lshrrev_b32 v4, 16, v4')
    a('v_lshrrev_b32 v5, 1, v4')
    a('v_add_u32 v5, 1, v5')
    a('v_and_b32 v6, 1, v4')
    a('v_lshl_add_u32 v6, v6, 1, -1')
    a('v_mul_i32_i24 v5, v5, v6')
    a('v_add3_u32 v5, v5, v2, s3')
    a('v_mul_i32_i24 v5, 896, v5')
    a('v_lshl_add_u32 v5, v3, 4, v5')
    a('v_xor_b32 v6, v3, v2')
    a('v_lshlrev_b32 v6, 4, v6')
    a('v_lshl_add_u32 v6, v2, 10, v6')
    a('v_xor_b32 v7, 128, v6')
    a('v_and_b32 v8, 15, v0')
    a('v_bfe_u32 v9, v0, 4, 2')
    a('s_mul_i32 s10, s8, 7'); a('s_add_u32 s10, s10, s9')
    a('v_lshrrev_b32 v10, 3, v8')
    a('v_lshlrev_b32 v10, 1, v10')
    a('v_lshl_add_u32 v13, v9, 2, v10')
    a('v_add_u32 v10, s3, v13')
    a('v_mul_u32_u24 v10, 896, v10')
    a('v_and_b32 v11, 7, v8')
    a('v_lshl_add_u32 v10, v11, 2, v10')
    a('s_lshl_b32 s11, s10, 5')
    a('v_add_u32 v10, s11, v10')
    a('v_add_u32 v11, 14336, v10')
    a('s_mul_i32 s11, s10, 14336')
    a('v_and_b32 v12, 63, v0')
    a('v_lshl_add_u32 v12, v12, 4, s11')
    a('s_waitcnt lgkmcnt(0)')
    a.stamp()
    srd(a, 16, 4, 5, HH, ACT_BYTES)
    for i in range(4):
        if i: a('v_add_u32 v5, 7168, v5')
        a(f'buffer_load_dwordx4 v[{16+4*i}:{19+4*i}], v5, s[16:19], 0 offen')
    a(f's_add_u32 s22, s4, {W2P}'); a('s_addc_u32 s23, s5, 0')
    a(f's_add_u32 s20, s4, {H2}'); a('s_addc_u32 s21, s5, 0')
    a('s_barrier')
    W = 40
    for k in range(14):
        if k and k % 4 == 0: a('v_add_u32 v12, 4096, v12')
        a(f'global_load_dwordx4 v[{W+4*k}:{W+4*k+3}], v12, s[22:23] offset:{1024*(k&3)}')
    for mt in range(2):
        for k in range(2): a(f'global_load_dword v{32+2*mt+k}, v{10+mt}, s[20:21] offset:{896*k}')
    a('v_xor_b32 v15, v9, v8')
    a('v_lshlrev_b32 v14, 10, v8')
    for u in range(4):
        a(f'v_xor_b32 v{96+u}, {4*u}, v15')
        a(f'v_lshl_add_u32 v{96+u}, v{96+u}, 4, v14')
    for r in range(8): a(f'v_mov_b32 v{100+r}, 0')
    a('v_cmp_gt_u32 s[26:27], 8, v8')
    for i in range(4):
        a(f's_waitcnt vmcnt({21-i})')
        a(f'ds_write_b128 v{6+(i&1)}, v[{16+4*i}:{19+4*i}] offset:{8192*i}')
    a('s_waitcnt lgkmcnt(0)')
    a.stamp()
    a('s_barrier')
    a.stamp()
    AF = 108
    for s in range(14):
        for mt in range(2):
            r = AF + 8*s + 4*mt
            a(f'ds_read_b128 v[{r}:{r+3}], v{96+(s&3)} offset:{256*(s>>2)+16384*mt}')
    for s in range(14):
        a(f's_waitcnt vmcnt({17-s}) lgkmcnt({min(15, 26-2*s)})')
        for mt in range(2):
            r = AF + 8*s + 4*mt
            a(f'v_mfma_f32_16x16x32_bf16 v[{100+4*mt}:{103+4*mt}], v[{r}:{r+3}], v[{W+4*s}:{W+4*s+3}], v[{100+4*mt}:{103+4*mt}]')
    a.stamp()
    a(f's_add_u32 s20, s4, {X1P}'); a('s_addc_u32 s21, s5, 0')
    a('v_mov_b32 v15, 0x3f803f80')
    a('s_waitcnt vmcnt(0)')
    for mt in range(2): exch8(a, 100 + 4*mt, 40 + 4*mt, None, 16, 's[26:27]')
    for q in range(4):
        a(f'v_cvt_pk_bf16_f32 v{48+q}, v{40+2*q}, v{41+2*q}')
    for q in range(4):
        unpack2(a, 40+2*q, 41+2*q, 48+q)
        unpack2(a, 52+2*q, 53+2*q, 32+q)
    for q in range(4):
        a(f'v_add_f32 v{40+2*q}, v{40+2*q}, v{52+2*q}'); a(f'v_add_f32 v{41+2*q}, v{41+2*q}, v{53+2*q}')
    for q in range(4):
        a(f'v_cvt_pk_bf16_f32 v{48+q}, v{40+2*q}, v{41+2*q}')
    for q in range(4):
        a(f'global_store_dword v{10+(q>>1)}, v{48+q}, s[20:21] offset:{896*(q&1)}')
        a(f'v_dot2_f32_bf16 v{56+2*q}, v{48+q}, v15, 0')
        a(f'v_dot2_f32_bf16 v{57+2*q}, v{48+q}, v{48+q}, 0')
    for dp in ('quad_perm:[1,0,3,2]', 'quad_perm:[2,3,0,1]', 'row_half_mirror'):
        for r in range(8): a(f'v_add_f32_dpp v{56+r}, v{56+r}, v{56+r} {dp} row_mask:0xf bank_mask:0xf')
    a('s_lshl_b32 s11, s9, 3')
    a('v_lshl_add_u32 v13, v13, 6, s11')
    a('v_and_b32 v14, 7, v0')
    a('v_cmp_eq_u32 vcc, 0, v14')
    a('s_and_saveexec_b64 s[24:25], vcc')
    for q in range(4): a(f'ds_write_b64 v13, v[{56+2*q}:{57+2*q}] offset:{ST+1024*(q>>1)+64*(q&1)}')
    a('s_mov_b64 exec, s[24:25]')
    a('s_waitcnt lgkmcnt(0)')
    a('s_barrier')
    a('v_cmp_gt_u32 vcc, 32, v0')
    a('s_and_saveexec_b64 s[24:25], vcc')
    a('s_cbranch_execz K4_DONE')
    a('v_lshlrev_b32 v13, 6, v0')
    for k in range(4): a(f'ds_read_b128 v[{16+4*k}:{19+4*k}], v13 offset:{ST+16*k}')
    a('v_add_u32 v14, s3, v0')
    a('v_lshlrev_b32 v14, 5, v14')
    a('s_lshl_b32 s11, s8, 3')
    a('v_add_u32 v14, s11, v14')
    a(f's_add_u32 s20, s4, {STAT}'); a('s_addc_u32 s21, s5, 0')
    a('s_waitcnt lgkmcnt(0)')
    for k in range(1, 7):
        a(f'v_add_f32 v16, v16, v{16+2*k}'); a(f'v_add_f32 v17, v17, v{17+2*k}')
    a('global_store_dwordx2 v14, v[16:17], s[20:21]')
    a.label('K4_DONE')
    a('s_waitcnt vmcnt(0)') if asmlib.STAMPS else None
    a.stamp_dump(3, 4)
    a.label('K4_END')
    a('s_endpgm')
    kernel('gemm2_kernel', (256, 1, 1), (448, 1, 1), LDSZ, 220, 40, a)

def gelu8(G, a, A0, A1, RI, T, C, dst):
    P = [A0, A0 + 2, A1, A1 + 2]
    pr = lambda r: f'v[{r}:{r+1}]'
    for i, p in enumerate(P): a(f'v_pk_mul_f32 {pr(p)}, {pr(p)}, {pr(RI + 2*(i&1))}')
    for i, p in enumerate(P): a(f'v_cvt_pk_bf16_f32 v{T+i}, v{p}, v{p+1}')
    for i, p in enumerate(P): G.unpack2(a, p, p+1, T+i)
    for i, p in enumerate(P): a(f'v_pk_mul_f32 {pr(T+2*i)}, {pr(p)}, {pr(p)}')
    for i, p in enumerate(P): a(f'v_pk_fma_f32 {pr(T+2*i)}, {pr(T+2*i)}, {pr(C)}, {pr(C+2)}')
    for i, p in enumerate(P): a(f'v_pk_mul_f32 {pr(T+2*i)}, {pr(T+2*i)}, {pr(p)}')
    for i in range(8): a(f'v_exp_f32 v{T+i}, v{T+i}')
    for i, p in enumerate(P): a(f'v_pk_add_f32 {pr(T+2*i)}, {pr(T+2*i)}, {pr(C+4)}')
    for i in range(8): a(f'v_rcp_f32 v{T+i}, v{T+i}')
    for i, p in enumerate(P): a(f'v_pk_mul_f32 {pr(p)}, {pr(p)}, {pr(T+2*i)}')
    for r in range(4): a(f'v_cvt_pk_bf16_f32 v{dst+r}, v{A0+r}, v{A1+r}')

def gelu_consts(G, a, C):
    from gen3 import GC1
    for i, v in enumerate((GC1, GC1, GC0, GC0, 1.0, 1.0)): a(f'v_mov_b32 v{C+i}, {G.f32(v)}')

def gen_k5(G):
    f32, srd, rnd_bf16, unpack2, kernel = G.f32, G.srd, G.rnd_bf16, G.unpack2, G.kernel
    a = Asm()
    RS = 114688; LDSZ = RS + 1024
    a('s_cmp_ge_u32 s2, 224')
    a('s_cbranch_scc1 K5_END')
    a.stamp(real=True); a.stamp()
    a('s_load_dwordx2 s[4:5], s[0:1], 144')
    a('s_lshr_b32 s6, s2, 3')
    a('s_mul_i32 s7, s6, 37'); a('s_lshr_b32 s7, s7, 8')
    a('s_mul_i32 s8, s7, 7'); a('s_sub_u32 s8, s6, s8')
    a('s_lshl_b32 s14, s7, 1'); a('s_add_u32 s14, s14, s8')
    a('s_bfe_u32 s6, s2, 0x20001'); a('s_lshl_b32 s6, s6, 2'); a('s_add_u32 s3, s6, s7')
    a('s_and_b32 s6, s2, 1'); a('s_mul_i32 s6, s6, 7'); a('s_add_u32 s8, s8, s6')
    a('s_lshl_b32 s3, s3, 7')
    for p in range(7):
        a('s_cmp_ge_u32 s14, 7'); a('s_cselect_b32 s15, 7, 0'); a('s_sub_u32 s14, s14, s15')
        a(f's_lshl_b32 s{40+p}, s14, 7'); a(f's_lshl_b32 s{48+p}, s14, 11')
        a('s_add_u32 s14, s14, 1')
    a('v_lshrrev_b32 v1, 6, v0')
    a('v_readfirstlane_b32 s9, v1')
    a('v_and_b32 v2, 15, v0')
    a('v_bfe_u32 v3, v0, 4, 2')
    a('v_and_b32 v4, 63, v0')
    a('v_lshrrev_b32 v5, 3, v4')
    a('v_and_b32 v6, 6, v5')
    a('v_xor_b32 v6, v6, v4')
    a('v_and_b32 v6, 7, v6')
    a('s_lshl_b32 s10, s9, 5'); a('s_add_u32 s10, s10, s3')
    a('v_add_u32 v5, s10, v5')
    a('v_mul_u32_u24 v5, 896, v5')
    a('v_lshl_add_u32 v5, v6, 4, v5')
    for b in range(1, 4): a(f'v_add_u32 v{26+b}, {7168*b}, v5')
    a('s_lshl_b32 s10, s8, 3'); a('s_lshl_b32 s11, s9, 1'); a('s_add_u32 s10, s10, s11')
    a('s_mul_i32 s11, s10, 14336')
    a('v_lshl_add_u32 v7, v4, 4, s11')
    a('v_add_u32 v11, 14336, v7')
    a('s_lshl_b32 s11, s10, 6')
    a('v_lshl_add_u32 v8, v2, 3, s11')
    a('v_add_u32 v9, s3, v0')
    a('v_lshlrev_b32 v9, 5, v9')
    a('v_cmp_gt_u32 vcc, 128, v0')
    a('v_mov_b32 v10, 0x80000000')
    a('v_cndmask_b32 v9, v10, v9, vcc')
    a('s_lshl_b32 s12, s9, 12')
    a('s_waitcnt lgkmcnt(0)')
    a.stamp()
    srd(a, 16, 4, 5, X1P, ACT_BYTES)
    srd(a, 20, 4, 5, STAT, 65536)
    srd(a, 28, 4, 5, W3P, 448*1792*2)
    a('buffer_load_dwordx4 v[16:19], v9, s[20:23], 0 offen')
    a('buffer_load_dwordx4 v[20:23], v9, s[20:23], 0 offen offset:16')
    a(f's_add_u32 s24, s4, {CS3}'); a('s_addc_u32 s25, s5, 0')
    a('global_load_dwordx2 v[24:25], v8, s[24:25]')
    W = 128
    issue = [('S', 0)] * 3
    def loads(p):
        for b in range(4):
            a(f's_add_u32 m0, s12, {16384*p + 1024*b}')
            a(f'buffer_load_dwordx4 v{5 if b == 0 else 26+b}, s[16:19], s{40+p} offen lds')
            issue.append(('L', p))
        for e in range(2):
            for jj in range(2):
                r = W + 16*p + 8*e + 4*jj
                a(f'buffer_load_dwordx4 v[{r}:{r+3}], v{7 if jj == 0 else 11}, s[28:31], s{48+p} offen offset:{1024*e}')
                issue.append(('L', p))
    loads(0); loads(1)
    a(f's_waitcnt vmcnt({len(issue)-2})')
    stats_from_partials(G, a, 16, 4, 32, 33, 34)
    a('v_sub_f32 v32, 0, v32')
    a('v_lshlrev_b32 v9, 2, v0')
    a('s_and_saveexec_b64 s[26:27], vcc')
    a(f'v_add_u32 v9, {RS}, v9')
    a('ds_write_b32 v9, v32')
    a('ds_write_b32 v9, v33 offset:512')
    a('s_mov_b64 exec, s[26:27]')
    loads(2)
    a('v_lshlrev_b32 v9, 4, v3')
    a(f'v_add_u32 v9, {RS}, v9')
    a('v_and_b32 v10, 6, v2')
    a('v_xor_b32 v10, v10, v3')
    a('v_lshlrev_b32 v10, 4, v10')
    a('v_lshl_add_u32 v10, v2, 7, v10')
    a('v_xor_b32 v14, 64, v10')
    a('v_add_u32 v15, 65536, v10'); a('v_add_u32 v26, 65536, v14')
    a('v_lshl_add_u32 v12, v3, 2, s3')
    a('v_mul_u32_u24 v12, 3584, v12')
    a('v_lshl_add_u32 v12, v2, 2, v12')
    a('s_lshl_b32 s11, s10, 5')
    a('v_add_u32 v12, s11, v12')
    a('v_add_u32 v13, 7168, v12')
    a(f's_add_u32 s24, s4, {HM}'); a('s_addc_u32 s25, s5, 0')
    a.stamp()
    ACC = 32; AF = 96
    for p in range(7):
        last = max(i for i, t in enumerate(issue) if t == ('L', p))
        a(f's_waitcnt vmcnt({len(issue) - 1 - last})' + (' lgkmcnt(0)' if p == 0 else ''))
        a('s_barrier')
        if p == 0:
            for m in range(8): a(f'ds_read_b128 v[{AF+4*m}:{AF+4*m+3}], v9 offset:{64*m}')
            a('s_waitcnt lgkmcnt(0)')
            for m in range(8):
                for jj in range(2):
                    for r in range(4): a(f'v_mul_f32 v{ACC+8*m+4*jj+r}, v{AF+4*m+r}, v{24+jj}')
        def rd(e, h):
            base = (10, 14)[e] if p < 4 else (15, 26)[e]
            for m in range(4*h, 4*h + 4):
                a(f'ds_read_b128 v[{AF+4*m}:{AF+4*m+3}], v{base} offset:{16384*(p&3) + 2048*m}')
        rd(0, 0); rd(0, 1)
        if p + 3 < 7: loads(p + 3)
        for e in range(2):
            for h in range(2):
                a(f's_waitcnt lgkmcnt({4 if not (e == 1 and h == 1) else 0})')
                for m in range(4*h, 4*h + 4):
                    for jj in range(2):
                        w = W + 16*p + 8*e + 4*jj; t = ACC + 8*m + 4*jj
                        a(f'v_mfma_f32_16x16x32_bf16 v[{t}:{t+3}], v[{AF+4*m}:{AF+4*m+3}], v[{w}:{w+3}], v[{t}:{t+3}]')
                if e == 0: rd(1, h)
        if p in (0, 3, 6): a.stamp()
    for m in range(8): a(f'ds_read_b128 v[{AF+4*m}:{AF+4*m+3}], v9 offset:{512+64*m}')
    gelu_consts(G, a, 16)
    a('s_waitcnt lgkmcnt(0)')
    for m in range(8):
        d = 128 + 4*m
        gelu8(G, a, ACC + 8*m, ACC + 8*m + 4, AF + 4*m, 160 + 8*(m & 1), 16, d)
        for r in range(4): a(f'global_store_dword v{12+(r>>1)}, v{d+r}, s[24:25] offset:{3584*(r&1)}')
        if m < 7: a('v_add_u32 v12, 57344, v12'); a('v_add_u32 v13, 57344, v13')
    a.stamp()
    a('s_waitcnt vmcnt(0)') if asmlib.STAMPS else None
    a.stamp_dump(4, 4)
    a.label('K5_END')
    a('s_endpgm')
    kernel('gemm3_kernel', (224, 1, 1), (256, 1, 1), LDSZ, 240, 60, a)

def gen_k6(G):
    f32, srd, rnd_bf16, unpack2, kernel = G.f32, G.srd, G.rnd_bf16, G.unpack2, G.kernel
    a = Asm()
    NSLOT = 5; SLOT = 28672; LDSZ = NSLOT * SLOT
    a('s_cmp_ge_u32 s2, 224')
    a('s_cbranch_scc1 K6_END')
    a.stamp(real=True); a.stamp()
    a('s_load_dwordx2 s[4:5], s[0:1], 128')
    a('s_load_dwordx2 s[8:9], s[0:1], 144')
    a('s_lshr_b32 s10, s2, 3')
    a('s_mul_i32 s11, s10, 37'); a('s_lshr_b32 s11, s11, 8')
    a('s_mul_i32 s12, s11, 7'); a('s_sub_u32 s12, s10, s12')
    a('s_and_b32 s10, s2, 7'); a('s_lshl_b32 s10, s10, 2'); a('s_add_u32 s3, s10, s11')
    a('s_lshl_b32 s3, s3, 6')
    a('v_lshrrev_b32 v1, 6, v0')
    a('v_readfirstlane_b32 s13, v1')
    a('v_and_b32 v2, 15, v0'); a('v_bfe_u32 v3, v0, 4, 2'); a('v_and_b32 v4, 63, v0')
    dma_lane(a, 5, 6, 4, 7)
    a('s_lshl_b32 s10, s13, 4'); a('s_add_u32 s10, s10, s3')
    a('v_add_u32 v5, s10, v5')
    a('v_mul_u32_u24 v5, 3584, v5')
    a('v_lshl_add_u32 v5, v6, 4, v5')
    a('s_lshl_b32 s10, s12, 2'); a('s_add_u32 s10, s10, s13')
    a('s_mul_i32 s11, s10, 57344')
    a('v_lshl_add_u32 v6, v4, 4, s11')
    a('v_lshrrev_b32 v7, 3, v2')
    a('v_lshlrev_b32 v7, 1, v7')
    a('v_lshl_add_u32 v7, v3, 2, v7')
    a('v_add_u32 v7, s3, v7')
    a('v_mul_u32_u24 v7, 896, v7')
    a('v_and_b32 v8, 7, v2')
    a('v_lshl_add_u32 v7, v8, 2, v7')
    a('s_lshl_b32 s11, s10, 5')
    a('v_add_u32 v7, s11, v7')
    a('s_lshl_b32 s11, s10, 6')
    a('v_lshl_add_u32 v8, v8, 3, s11')
    frag_rd_addr(a, 9, 2, 3, 10)
    a('s_lshl_b32 s14, s13, 10')
    a('v_cmp_gt_u32 s[28:29], 8, v2')
    a('s_waitcnt lgkmcnt(0)')
    a.stamp()
    srd(a, 16, 8, 9, HM, 2048*3584)
    a(f's_add_u32 s20, s8, {W4P}'); a('s_addc_u32 s21, s9, 0')
    W = 64
    issue = []
    def dma(st):
        for ks in range(7):
            off = 64 * ks
            a(f's_add_u32 m0, s14, {(st % NSLOT)*SLOT + 4096*ks - off}')
            a(f'buffer_load_dwordx4 v5, s[16:19], 0 offen offset:{off} lds')
            issue.append(('D', st))
        a('v_add_u32 v5, 448, v5')
    def wld(st):
        for ks in range(7):
            r = W + 28*(st & 3) + 4*ks
            if ks == 4: a('v_add_u32 v6, 4096, v6')
            a(f'global_load_dwordx4 v[{r}:{r+3}], v6, s[20:21] offset:{1024*(ks&3)}')
            issue.append(('W', st))
        a('v_add_u32 v6, 3072, v6')
    for st in range(5):
        dma(st)
        if st < 4: wld(st)
    for r in range(16): a(f'v_mov_b32 v{32+r}, 0')
    for sl in range(NSLOT): a(f'v_add_u32 v{10+sl}, {sl*SLOT}, v9')
    a.stamp()
    AF = 176
    for st in range(8):
        last = max(i for i, t in enumerate(issue) if t in (('D', st), ('W', st)))
        a(f's_waitcnt vmcnt({len(issue) - 1 - last})')
        a('s_barrier')
        if st >= 1:
            if st + 4 < 8: dma(st + 4)
            if st + 3 < 8: wld(st + 3)
        if st == 5:
            a(f's_add_u32 s22, s8, {X1P}'); a('s_addc_u32 s23, s9, 0')
            a(f's_add_u32 s24, s8, {X1}'); a('s_addc_u32 s25, s9, 0')
            a(f's_add_u32 s26, s8, {MOD+5*1792}'); a('s_addc_u32 s27, s9, 0')
            a('v_mov_b32 v15, v7')
            for mt in range(4):
                if mt: a('v_add_u32 v15, 14336, v15')
                for k in range(2):
                    a(f'global_load_dword v{208+2*mt+k}, v15, s[22:23] offset:{896*k}'); issue.append(('E', 0))
                    a(f'global_load_dword v{216+2*mt+k}, v15, s[24:25] offset:{896*k}'); issue.append(('E', 0))
            a('global_load_dwordx2 v[224:225], v8, s[26:27]'); issue.append(('E', 0))
        base = 10 + st % NSLOT
        def rd(ks, buf):
            for m in range(4):
                r = AF + 16*buf + 4*m
                a(f'ds_read_b128 v[{r}:{r+3}], v{base} offset:{4096*ks + 1024*m}')
        rd(0, 0)
        for ks in range(7):
            if ks < 6: rd(ks + 1, (ks + 1) & 1)
            a(f's_waitcnt lgkmcnt({4 if ks < 6 else 0})')
            w = W + 28*(st & 3) + 4*ks
            for m in range(4):
                r = AF + 16*(ks & 1) + 4*m
                a(f'v_mfma_f32_16x16x32_bf16 v[{32+4*m}:{35+4*m}], v[{r}:{r+3}], v[{w}:{w+3}], v[{32+4*m}:{35+4*m}]')
        if st in (0, 3, 7): a.stamp()
    a('s_waitcnt vmcnt(0)')
    X = 64
    for mt in range(4): exch8(a, 32 + 4*mt, X + 4*mt, None, 16, 's[28:29]')
    Q = range(8)
    for q in Q: a(f'v_cvt_pk_bf16_f32 v{96+q}, v{X+2*q}, v{X+2*q+1}')
    for q in Q: unpack2(a, X+2*q, X+2*q+1, 96+q); unpack2(a, 80+2*q, 81+2*q, 208+q)
    for q in Q: a(f'v_add_f32 v{X+2*q}, v{X+2*q}, v{80+2*q}'); a(f'v_add_f32 v{X+2*q+1}, v{X+2*q+1}, v{81+2*q}')
    for q in Q: a(f'v_cvt_pk_bf16_f32 v{96+q}, v{X+2*q}, v{X+2*q+1}')
    for q in Q: unpack2(a, X+2*q, X+2*q+1, 96+q)
    for q in Q: a(f'v_mul_f32 v{X+2*q}, v{X+2*q}, v224'); a(f'v_mul_f32 v{X+2*q+1}, v{X+2*q+1}, v225')
    for q in Q: a(f'v_cvt_pk_bf16_f32 v{96+q}, v{X+2*q}, v{X+2*q+1}')
    for q in Q: unpack2(a, X+2*q, X+2*q+1, 96+q); unpack2(a, 80+2*q, 81+2*q, 216+q)
    for q in Q: a(f'v_add_f32 v{X+2*q}, v{X+2*q}, v{80+2*q}'); a(f'v_add_f32 v{X+2*q+1}, v{X+2*q+1}, v{81+2*q}')
    for q in Q:
        a(f'v_cvt_pk_bf16_f32 v{96+q}, v{X+2*q}, v{X+2*q+1}')
        if q and q % 2 == 0: a('v_add_u32 v7, 14336, v7')
        a(f'global_store_dword v7, v{96+q}, s[4:5] offset:{896*(q&1)}')
    a('s_waitcnt vmcnt(0)') if asmlib.STAMPS else None
    a.stamp_dump(5, 8)
    a.label('K6_END')
    a('s_endpgm')
    kernel('gemm4_kernel', (224, 1, 1), (256, 1, 1), LDSZ, 228, 40, a)

def gen_all(G):
    gen_k4(G); gen_k5(G); gen_k6(G)
```

```python
import os, sys
os.environ['STAMPS'] = '1'
sys.path.insert(0, 'work')
import asmlib
asmlib.STAMP_OFF = 32 << 20
import gen as G
from asmlib import Asm
REG = 64 << 20
NL = 16
def writer(name):
    a = Asm()
    a('s_cmp_ge_u32 s2, 256')
    a(f's_cbranch_scc1 {name}_END')
    a('s_load_dwordx2 s[4:5], s[0:1], 144')
    a('s_lshl_b32 s6, s2, 16')
    a('v_lshl_add_u32 v1, v0, 4, s6')
    for r in range(4): a(f'v_mov_b32 v{4+r}, v0')
    a('s_waitcnt lgkmcnt(0)')
    a(f's_add_u32 s8, s4, {REG}'); a('s_addc_u32 s9, s5, 0')
    for k in range(16):
        a('global_store_dwordx4 v1, v[4:7], s[8:9]')
        a('v_add_u32 v1, 4096, v1')
    a.label(f'{name}_END')
    a('s_endpgm')
    G.kernel(name + '_kernel', (256, 1, 1), (256, 1, 1), 0, 16, 20, a)
def mk(name, kidx, shift):
    a = Asm()
    a('s_cmp_ge_u32 s2, 256')
    a(f's_cbranch_scc1 {name}_END')
    a.stamp(real=True)
    a('s_load_dwordx2 s[4:5], s[0:1], 144')
    a(f's_add_u32 s6, s2, {shift}'); a('s_and_b32 s6, s6, 255')
    a('s_lshl_b32 s6, s6, 16')
    a('v_lshl_add_u32 v1, v0, 4, s6')
    a('s_waitcnt lgkmcnt(0)')
    a(f's_add_u32 s8, s4, {REG}'); a('s_addc_u32 s9, s5, 0')
    a('s_barrier')
    a.stamp()
    for k in range(NL):
        a(f'global_load_dwordx4 v[{8+4*k}:{11+4*k}], v1, s[8:9]')
        a('v_add_u32 v1, 4096, v1')
    a.stamp()
    a('s_waitcnt vmcnt(0)')
    a.stamp()
    a('s_barrier')
    a.stamp_dump(kidx, 4)
    a.label(f'{name}_END')
    a('s_endpgm')
    G.kernel(name + '_kernel', (256, 1, 1), (256, 1, 1), 0, 252, 100, a)
writer('wr')
cfgs = [('a', 8, False), ('b', 8, True), ('c', 1, False), ('d', 1, True), ('e', 16, True), ('f', 24, False), ('g', 5, False), ('h', 0, True)]
for i, (n, sh, pre) in enumerate(cfgs): mk('mb' + n, i, sh)
K = {k[0]: k for k in G.KERNELS}
order = []
for (n, sh, pre) in cfgs:
    if pre: order += [K['wr_kernel']]
    order.append(K['mb' + n + '_kernel'])
G.emit('mb6.s')
s = open('mb6.s').read().split('\n')
hdr = [l for l in s if not l.startswith('; @launch')]
idx = [i for i, l in enumerate(hdr) if l.startswith('.amdgcn_target')][0]
ll = [f'; @launch kernel={k[0]} grid=({k[1][0]},1,1) block=({k[2][0]},1,1) lds={k[3]}' for k in order]
open('mb6.s', 'w').write('\n'.join(hdr[:idx] + ll + hdr[idx:]))
```

```python
import asmlib
from asmlib import Asm
from layout import *

def gen_k2(G):
    f32, srd, rnd_bf16, unpack2, kernel = G.f32, G.srd, G.rnd_bf16, G.unpack2, G.kernel
    a = Asm()
    a('s_cmp_lt_u32 s2, 224')
    a('s_cbranch_scc1 K2_CONV')
    a('s_cmp_lt_u32 s2, 294')
    a('s_cbranch_scc1 K2_PACK')
    a('s_endpgm')
    a.label('K2_CONV')
    pr = lambda r: f'v[{r}:{r+1}]'
    TCS = 34816; KB = 69632; RED = 17408
    osig = [0, 4, 8, 12, 2, 6, 10, 14]
    tbase = lambda sg: sg * 4352 + osig[sg] * 16
    a.stamp(real=True); a.stamp()
    a('s_load_dwordx2 s[4:5], s[0:1], 144')
    a('s_load_dwordx2 s[6:7], s[0:1], 64')
    a('s_lshl_b32 s3, s2, 3')
    a('s_lshl_b32 s16, s2, 2')
    a('v_lshrrev_b32 v1, 2, v0')
    a('v_mul_u32_u24 v1, 28672, v1')
    a('v_and_b32 v2, 3, v0')
    a('v_lshl_add_u32 v1, v2, 4, v1')
    a('s_lshl_b32 s17, s2, 7')
    a('v_add_u32 v1, s17, v1')
    a('s_lshl_b32 s17, s2, 13')
    a('v_lshl_add_u32 v2, v0, 4, s17')
    a('v_add_u32 v7, 4096, v2')
    a('s_waitcnt lgkmcnt(0)')
    a.stamp()
    a(f's_add_u32 s22, s3, {MOD}');        a('s_load_dwordx2 s[8:9], s[4:5], s22')
    a(f's_add_u32 s22, s3, {MOD+7*1792}'); a('s_load_dwordx2 s[10:11], s[4:5], s22')
    a(f's_add_u32 s22, s3, {MOD+3584}');   a('s_load_dwordx2 s[12:13], s[4:5], s22')
    a(f's_add_u32 s22, s3, {KSC}');        a('s_load_dwordx2 s[14:15], s[4:5], s22')
    a('s_load_dword s16, s[6:7], s16')
    a(f's_add_u32 s18, s4, {XNT}'); a('s_addc_u32 s19, s5, 0')
    a(f's_add_u32 s20, s4, {KP}'); a('s_addc_u32 s21, s5, 0')
    a('global_load_dwordx4 v[8:11], v1, s[18:19]')
    a('global_load_dwordx4 v[12:15], v1, s[18:19] offset:64')
    a('global_load_dwordx4 v[16:19], v2, s[20:21]')
    a('global_load_dwordx4 v[20:23], v7, s[20:21]')
    for r in range(4): a(f'v_mov_b32 v{24+r}, 0')
    a('v_and_b32 v3, 31, v0')
    a('v_lshlrev_b32 v3, 4, v3')
    a('v_lshrrev_b32 v4, 5, v0')
    a('v_mul_u32_u24 v4, 4608, v4')
    a('v_add_u32 v3, v3, v4')
    a(f'v_add_u32 v3, {KB}, v3')
    a('v_and_b32 v4, 7, v0')
    a('v_mul_u32_u24 v5, 4352, v4')
    a('v_and_b32 v6, 3, v4')
    a('v_lshl_add_u32 v5, v6, 6, v5')
    a('v_lshrrev_b32 v6, 2, v4')
    a('v_lshl_add_u32 v5, v6, 5, v5')
    a('v_bfe_u32 v6, v0, 3, 1')
    a(f'v_mul_u32_u24 v6, {TCS}, v6')
    a('v_add_u32 v5, v5, v6')
    a('v_cmp_gt_u32 vcc, 64, v0')
    a('s_and_saveexec_b64 s[24:25], vcc')
    a('ds_write_b128 v3, v[24:27]')
    a('v_cmp_gt_u32 vcc, 16, v0')
    a('s_and_b64 exec, exec, vcc')
    a('ds_write_b128 v5, v[24:27] offset:4096')
    a('ds_write_b128 v5, v[24:27] offset:4112')
    a('s_mov_b64 exec, s[24:25]')
    a('v_lshlrev_b32 v3, 4, v0')
    a('v_sub_u32 v4, 4080, v3')
    a(f'v_add_u32 v5, {KB+512}, v3')
    a('v_and_b32 v100, 15, v0')
    a('v_bfe_u32 v101, v0, 4, 2')
    a('v_lshrrev_b32 v102, 6, v0')
    a('v_readfirstlane_b32 s26, v102')
    a('s_lshr_b32 s27, s26, 1')
    a('s_and_b32 s28, s26, 1')
    a('v_and_b32 v103, 7, v100')
    a('v_sub_u32 v103, 7, v103')
    a('v_mul_u32_u24 v104, 4352, v103')
    a('v_and_b32 v105, 3, v103')
    a('v_lshl_add_u32 v104, v105, 6, v104')
    a('v_lshrrev_b32 v105, 2, v103')
    a('v_lshl_add_u32 v104, v105, 5, v104')
    a('v_and_b32 v105, 1, v101')
    a('v_lshrrev_b32 v106, 1, v101')
    a('v_lshlrev_b32 v106, 1, v106')
    a('v_sub_u32 v105, v105, v106')
    a('v_lshrrev_b32 v106, 3, v100')
    a('v_sub_u32 v106, v105, v106')
    a('v_add_u32 v106, 19, v106')
    a('v_lshl_add_u32 v104, v106, 4, v104')
    a(f's_mul_i32 s29, s27, {TCS}')
    a('s_lshl_b32 s30, s28, 8')
    a('s_sub_u32 s29, s29, s30')
    a('v_add_u32 v176, s29, v104')
    a('v_lshlrev_b32 v106, 5, v100')
    a('v_lshl_add_u32 v105, v105, 4, v106')
    a('s_mul_i32 s29, s27, 4608')
    a(f's_add_u32 s29, s29, {KB+512-192}')
    a('s_sub_u32 s29, s29, s30')
    a('v_add_u32 v177, s29, v105')
    a('v_lshlrev_b32 v106, 6, v100')
    a('v_lshl_add_u32 v106, v101, 4, v106')
    a(f's_mul_i32 s29, s27, {TCS}')
    a('s_lshl_b32 s30, s28, 13')
    a('s_add_u32 s29, s29, s30'); a(f's_add_u32 s29, s29, {RED}')
    a('v_add_u32 v178, s29, v106')
    a('s_waitcnt lgkmcnt(0)')
    a.stamp()
    for c in range(2):
        b = 28 + 8*c
        a(f'v_mov_b32 v{b}, s{10+c}'); a(f'v_mov_b32 v{b+1}, s{10+c}')
        a(f'v_mov_b32 v{b+2}, s{8+c}'); a(f'v_mov_b32 v{b+3}, s{8+c}')
        a(f'v_mul_f32 v6, {f32(32.0)}, v{b}')
        a(f'v_add_f32 v6, |v6|, |v{b+2}|')
        a('v_frexp_exp_i32_f32 v6, v6')
        a('v_mov_b32 v7, 100')
        a('v_min_i32 v6, v6, v7')
        a('v_sub_u32 v7, 0, v7')
        a('v_max_i32 v6, v6, v7')
        a('v_sub_u32 v7, 15, v6')
        a(f'v_ldexp_f32 v{b+4}, 1.0, v7'); a(f'v_mov_b32 v{b+5}, v{b+4}')
        a('v_add_u32 v7, -15, v6')
        a(f'v_mov_b32 v6, s{14+c}')
        a(f'v_mul_f32 v6, s{12+c}, v6')
        a(f'v_ldexp_f32 v{b+6}, v6, v7')
        a(f'v_mov_b32 v6, s16')
        a('v_lshlrev_b32 v6, 16, v6' if c == 0 else 'v_and_b32 v6, 0xffff0000, v6')
        a(f'v_mul_f32 v6, s{12+c}, v6')
        a(f'v_ldexp_f32 v{b+7}, v6, v7')
    for c in range(2):
        b = 28 + 8*c
        a(f's_waitcnt vmcnt({3-c})')
        src = 8 + 4*c
        for k in range(4): unpack2(a, 44+2*k, 45+2*k, src + k)
        for k in range(4): a(f'v_pk_fma_f32 {pr(44+2*k)}, {pr(44+2*k)}, {pr(b)}, {pr(b+2)}')
        for k in range(4): a(f'v_cvt_pk_bf16_f32 v{52+k}, v{44+2*k}, v{45+2*k}')
        for k in range(4): unpack2(a, 44+2*k, 45+2*k, 52 + k)
        for k in range(4): a(f'v_pk_mul_f32 {pr(44+2*k)}, {pr(44+2*k)}, {pr(b+4)}')
        for k in range(4): a(f'v_cvt_pk_f16_f32 v{52+k}, v{51-2*k}, v{50-2*k}')
        a(f'ds_write_b128 v4, v[52:55] offset:{TCS*c}')
    a('s_waitcnt vmcnt(0)')
    a('ds_write_b128 v5, v[16:19]')
    a('ds_write_b128 v5, v[20:23] offset:4608')
    a('s_waitcnt lgkmcnt(0)')
    a.stamp()
    a('s_barrier')
    for c in range(2):
        a(f'ds_read_b128 v[{44+8*c}:{47+8*c}], v3 offset:{TCS*c}')
        a(f'ds_read_b128 v[{48+8*c}:{51+8*c}], v3 offset:{TCS*c+16}')
    for c in range(2):
        D = 44 + 8*c
        a(f's_waitcnt lgkmcnt({2-2*c})' if c == 0 else 's_waitcnt lgkmcnt(7)')
        P, O, O2 = 60 + 18*c, 66 + 18*c, 72 + 18*c
        for i in range(6): a(f'v_mov_b32 v{P+i}, v{D+1+i}')
        for i in range(6): a(f'v_alignbit_b32 v{O+i}, v{D+i+1}, v{D+i}, 16')
        for i in range(6): a(f'v_alignbit_b32 v{O2+i}, v{D+i+2}, v{D+i+1}, 16')
        src = {1: O, 2: P, 3: O2, 4: D+2, 5: O+2, 6: P+2, 7: O2+2}
        for sg in range(1, 8):
            a(f'ds_write_b128 v3, v[{src[sg]}:{src[sg]+3}] offset:{TCS*c + tbase(sg)}')
    a('v_cmp_gt_u32 vcc, 128, v0')
    a('v_cndmask_b32 v180, v42, v34, vcc'); a('v_cndmask_b32 v182, v43, v35, vcc')
    a('v_mov_b32 v181, v180'); a('v_mov_b32 v183, v182')
    a('v_and_b32 v6, 127, v0')
    a('v_lshrrev_b32 v7, 7, v0')
    a(f'v_mul_u32_u24 v8, {TCS}, v7')
    a('v_lshl_add_u32 v184, v6, 6, v8')
    a('v_lshlrev_b32 v9, 5, v6')
    a('v_sub_u32 v9, 4064, v9')
    a('v_add_u32 v185, v8, v9')
    a('v_lshlrev_b32 v9, 5, v6')
    a('v_lshl_add_u32 v9, v7, 12, v9')
    a('s_lshl_b32 s29, s2, 13')
    a('v_add_u32 v186, s29, v9')
    ACC = 8
    a('s_waitcnt lgkmcnt(0)')
    a.stamp()
    a('s_barrier')
    a.stamp()
    SETS = (48, 112)
    def reads(ci, base):
        for p in range(8):
            a(f'ds_read_b128 v[{base+4*p}:{base+4*p+3}], v176 offset:{512*(7-p)+32*(6-2*ci)}')
            a(f'ds_read_b128 v[{base+32+4*p}:{base+35+4*p}], v177 offset:{512*p+32*(6-2*ci)}')
    order = sorted([(p, q) for p in range(8) for q in range(8) if p + q <= 7], key=lambda t: (max(t), t))
    reads(0, SETS[0])
    for r in range(32): a(f'v_mov_b32 v{ACC+r}, 0')
    for ci in range(4):
        base = SETS[ci & 1]
        lastmx = -1
        nxt = 0
        for idx, (p, q) in enumerate(order):
            mx = max(p, q)
            if ci == 0 and mx != lastmx:
                a(f's_waitcnt lgkmcnt({14 - 2*mx})'); lastmx = mx
            elif ci > 0 and idx == 0:
                a('s_waitcnt lgkmcnt(0)')
            t = ACC + 4*(p + q)
            a(f'v_mfma_f32_16x16x32_f16 v[{t}:{t+3}], v[{base+4*p}:{base+4*p+3}], v[{base+32+4*q}:{base+35+4*q}], v[{t}:{t+3}]')
            if ci < 3 and (ci > 0 or mx == 7) and nxt < 8:
                nb = SETS[(ci + 1) & 1]; pp = nxt; nxt += 1
                a(f'ds_read_b128 v[{nb+4*pp}:{nb+4*pp+3}], v176 offset:{512*(7-pp)+32*(6-2*(ci+1))}')
                a(f'ds_read_b128 v[{nb+32+4*pp}:{nb+35+4*pp}], v177 offset:{512*pp+32*(6-2*(ci+1))}')
        while ci < 3 and nxt < 8:
            nb = SETS[(ci + 1) & 1]; pp = nxt; nxt += 1
            a(f'ds_read_b128 v[{nb+4*pp}:{nb+4*pp+3}], v176 offset:{512*(7-pp)+32*(6-2*(ci+1))}')
            a(f'ds_read_b128 v[{nb+32+4*pp}:{nb+35+4*pp}], v177 offset:{512*pp+32*(6-2*(ci+1))}')
    a.stamp()
    a('ds_read_b128 v[48:51], v185')
    a('ds_read_b128 v[52:55], v185 offset:16')
    a('s_barrier')
    for t in range(8): a(f'ds_write_b128 v178, v[{ACC+4*t}:{ACC+4*t+3}] offset:{1024*t}')
    a(f's_add_u32 s20, s4, {GT}'); a('s_addc_u32 s21, s5, 0')
    a('s_waitcnt lgkmcnt(0)')
    a('s_barrier')
    a.stamp()
    for k in range(4):
        a(f'ds_read_b128 v[{64+4*k}:{67+4*k}], v184 offset:{RED+16*k}')
        a(f'ds_read_b128 v[{80+4*k}:{83+4*k}], v184 offset:{RED+8192+16*k}')
    for k in range(8):
        a(f'v_cvt_f32_f16_sdwa v{96+2*k}, v{55-k} src0_sel:WORD_1')
        a(f'v_cvt_f32_f16 v{97+2*k}, v{55-k}')
    for k in range(8): a(f'v_pk_mul_f32 {pr(96+2*k)}, {pr(96+2*k)}, v[182:183]')
    a('s_waitcnt lgkmcnt(0)')
    for k in range(8): a(f'v_pk_add_f32 {pr(64+2*k)}, {pr(64+2*k)}, {pr(80+2*k)}')
    for k in range(8): a(f'v_pk_fma_f32 {pr(64+2*k)}, {pr(64+2*k)}, v[180:181], {pr(96+2*k)}')
    for k in range(8): a(f'v_cvt_pk_bf16_f32 v{80+k}, v{64+2*k}, v{65+2*k}')
    a('global_store_dwordx4 v186, v[80:83], s[20:21]')
    a('global_store_dwordx4 v186, v[84:87], s[20:21] offset:16')
    a('s_waitcnt vmcnt(0)') if asmlib.STAMPS else None
    a.stamp_dump(1, 4)
    a('s_endpgm')
    a.label('K2_PACK')
    a.stamp(real=True); a.stamp()
    a('s_load_dwordx8 s[12:19], s[0:1], 80')
    a('s_load_dwordx2 s[20:21], s[0:1], 144')
    a('s_sub_u32 s3, s2, 224')
    a('s_waitcnt lgkmcnt(0)')
    a('s_mov_b32 s6, 896'); a('s_mov_b32 s10, 14336'); a('s_mov_b32 s11, -1')
    a('s_cmp_lt_u32 s3, 14')
    a('s_cbranch_scc0 K2_P34')
    a('s_cmp_lt_u32 s3, 7')
    a('s_cselect_b32 s4, s12, s14'); a('s_cselect_b32 s5, s13, s15')
    a(f's_mov_b32 s22, {W2P}')
    a(f's_cselect_b32 s22, {W1P}, s22')
    a(f's_cselect_b32 s11, {CS1}, -1')
    a('s_cselect_b32 s23, 0, 7')
    a('s_sub_u32 s23, s3, s23')
    a('s_mov_b32 s24, 0')
    a('s_branch K2_PGO')
    a.label('K2_P34')
    a('s_cmp_lt_u32 s3, 42')
    a('s_cbranch_scc0 K2_P4')
    a('s_mov_b32 s4, s16'); a('s_mov_b32 s5, s17'); a('s_mov_b32 s6, 3584')
    a(f's_mov_b32 s22, {W3P}'); a(f's_mov_b32 s11, {CS3}')
    a('s_sub_u32 s23, s3, 14'); a('s_mov_b32 s24, 0')
    a('s_branch K2_PGO')
    a.label('K2_P4')
    a('s_mov_b32 s4, s18'); a('s_mov_b32 s5, s19')
    a(f's_mov_b32 s22, {W4P}'); a('s_mov_b32 s10, 57344')
    a('s_sub_u32 s23, s3, 42')
    a('s_mul_i32 s24, s23, 37'); a('s_lshr_b32 s24, s24, 8')
    a('s_mul_i32 s25, s24, 7'); a('s_sub_u32 s23, s23, s25')
    a.label('K2_PGO')
    a(f's_mul_i32 s25, s24, {448*896}')
    a('s_lshl_b32 s26, s23, 7')
    a('s_add_u32 s25, s25, s26')
    a('s_add_u32 s4, s4, s25'); a('s_addc_u32 s5, s5, 0')
    a('s_lshl_b32 s25, s23, 2'); a('s_mul_i32 s25, s25, s10')
    a('s_mul_i32 s26, s24, 14336'); a('s_add_u32 s25, s25, s26'); a('s_add_u32 s25, s25, s22')
    a('s_add_u32 s8, s20, s25'); a('s_addc_u32 s9, s21, 0')
    a('v_lshrrev_b32 v1, 3, v0')
    a('v_and_b32 v2, 7, v0')
    a('v_mul_lo_u32 v3, v1, s6')
    a('v_lshl_add_u32 v3, v2, 4, v3')
    a('s_lshl_b32 s25, s6, 5')
    for i in range(14):
        if i: a('v_add_u32 v3, s25, v3')
        a(f'global_load_dwordx4 v[{16+4*i}:{19+4*i}], v3, s[4:5]')
    a('v_bfe_u32 v4, v1, 1, 1')
    a('v_bfe_u32 v5, v1, 3, 1')
    a('v_lshlrev_b32 v4, 2, v4')
    a('v_lshl_or_b32 v4, v5, 1, v4')
    a('v_xor_b32 v4, v4, v2')
    a('v_lshlrev_b32 v4, 4, v4')
    a('v_lshl_add_u32 v4, v1, 7, v4')
    a('v_mov_b32 v76, 0x05040100')
    a('v_mov_b32 v77, 0x07060302')
    a('v_cmp_eq_u32 vcc, 1, v5')
    a('v_cndmask_b32 v78, v76, v77, vcc')
    a('v_cndmask_b32 v79, v77, v76, vcc')
    a('v_and_b32 v5, 15, v0'); a('v_bfe_u32 v6, v0, 4, 2'); a('v_lshrrev_b32 v7, 6, v0')
    a('v_lshrrev_b32 v8, 2, v5')
    a('v_lshl_add_u32 v8, v6, 3, v8')
    a('v_and_b32 v9, 3, v5')
    a('v_lshrrev_b32 v10, 1, v7')
    a('v_lshl_add_u32 v10, v10, 2, v9')
    a('v_and_b32 v11, 1, v7')
    a('v_and_b32 v12, 1, v9')
    a('v_lshl_add_u32 v12, v7, 1, v12')
    a('v_lshrrev_b32 v13, 1, v9')
    a('s_cmp_eq_u32 s11, -1')
    a('s_cselect_b64 s[26:27], -1, 0')
    a('v_cndmask_b32 v10, v10, v12, s[26:27]')
    a('v_cndmask_b32 v11, v11, v13, s[26:27]')
    a('v_bfe_u32 v12, v8, 1, 1'); a('v_bfe_u32 v13, v8, 3, 1')
    a('v_lshlrev_b32 v12, 2, v12')
    a('v_lshl_or_b32 v12, v13, 1, v12')
    a('v_xor_b32 v10, v10, v12')
    a('v_xor_b32 v11, v11, v13')
    a('v_lshlrev_b32 v9, 7, v8')
    a('v_lshl_add_u32 v9, v10, 4, v9')
    a('v_lshl_add_u32 v9, v11, 3, v9')
    a('v_mul_lo_u32 v10, v7, s10')
    a('v_and_b32 v11, 63, v0')
    a('v_lshl_add_u32 v10, v11, 4, v10')
    for r in range(4): a(f'v_mov_b32 v{12+r}, 0x3f803f80')
    for r in range(4): a(f'v_mov_b32 v{72+r}, 0')
    for i in range(14):
        a(f's_waitcnt vmcnt({13-i})')
        b = 16 + 4*i; t = 80 + 4*(i & 1)
        a(f'v_perm_b32 v{t}, v{b+1}, v{b}, v78')
        a(f'v_perm_b32 v{t+1}, v{b+3}, v{b+2}, v78')
        a(f'v_perm_b32 v{t+2}, v{b+1}, v{b}, v79')
        a(f'v_perm_b32 v{t+3}, v{b+3}, v{b+2}, v79')
        a(f'ds_write_b128 v4, v[{t}:{t+3}] offset:{4096*i}')
    a('s_waitcnt lgkmcnt(0)')
    a.stamp()
    a('s_barrier')
    for s in range(14):
        a(f'ds_read_b64_tr_b16 v[{16+4*s}:{17+4*s}], v9 offset:{4096*s}')
        a(f'ds_read_b64_tr_b16 v[{18+4*s}:{19+4*s}], v9 offset:{4096*s+512}')
        if s >= 6:
            s1 = s - 6
            a('s_waitcnt lgkmcnt(12)')
            a(f'global_store_dwordx4 v10, v[{16+4*s1}:{19+4*s1}], s[8:9] offset:{1024*(s1&3)}')
            a(f'v_mfma_f32_16x16x32_bf16 v[72:75], v[12:15], v[{16+4*s1}:{19+4*s1}], v[72:75]')
            if (s1 & 3) == 3: a('v_add_u32 v10, 4096, v10')
    for s1 in range(8, 14):
        a(f's_waitcnt lgkmcnt({2*(13-s1)})')
        a(f'global_store_dwordx4 v10, v[{16+4*s1}:{19+4*s1}], s[8:9] offset:{1024*(s1&3)}')
        a(f'v_mfma_f32_16x16x32_bf16 v[72:75], v[12:15], v[{16+4*s1}:{19+4*s1}], v[72:75]')
        if (s1 & 3) == 3: a('v_add_u32 v10, 4096, v10')
    if asmlib.STAMPS:
        a('s_waitcnt vmcnt(0)'); a.stamp(); a.stamp(); a.stamp(); a.stamp(); a.stamp(); a.stamp()
        a.stamp_dump(1, 20)
    a('s_cmp_eq_u32 s11, -1')
    a('s_cbranch_scc1 K2_END')
    a('v_cmp_gt_u32 vcc, 16, v11')
    a('s_and_saveexec_b64 s[26:27], vcc')
    a('s_lshl_b32 s25, s23, 8')
    a('s_add_u32 s25, s25, s11')
    a('v_lshrrev_b32 v6, 1, v7')
    a('v_lshl_add_u32 v5, v6, 4, v5')
    a('v_and_b32 v6, 1, v7')
    a('v_lshl_add_u32 v5, v5, 1, v6')
    a('v_lshl_add_u32 v5, v5, 2, s25')
    a('global_store_dword v5, v72, s[20:21]')
    a.label('K2_END')
    a('s_endpgm')
    kernel('conv_kernel', (294, 1, 1), (256, 1, 1), 78848, 188, 40, a)

def gen_all(G):
    gen_k2(G)
    try:
        import gen3
        gen3.gen_all(G)
    except ImportError:
        pass
```

```python
import math, asmlib
from asmlib import Asm
from layout import *
LOG2E = 1.4426950408889634
GC0 = -2 * LOG2E * math.sqrt(2 / math.pi)
GC1 = GC0 * 0.044715

def gelu_pair(G, a, x0, x1, t0, t1, sc0, dst):
    f32 = G.f32
    a(f'v_cvt_pk_bf16_f32 v{t0}, v{x0}, v{x1}')
    G.unpack2(a, x0, x1, t0)
    a(f'v_mul_f32 v{t0}, v{x0}, v{x0}')
    a(f'v_mul_f32 v{t1}, v{x1}, v{x1}')
    a(f'v_fmaak_f32 v{t0}, {f32(GC1)}, v{t0}, {f32(GC0)}') if False else None
    a(f'v_mul_f32 v{t0}, {f32(GC1)}, v{t0}')
    a(f'v_mul_f32 v{t1}, {f32(GC1)}, v{t1}')
    a(f'v_add_f32 v{t0}, s{sc0}, v{t0}')
    a(f'v_add_f32 v{t1}, s{sc0}, v{t1}')
    a(f'v_mul_f32 v{t0}, v{t0}, v{x0}')
    a(f'v_mul_f32 v{t1}, v{t1}, v{x1}')
    a(f'v_exp_f32 v{t0}, v{t0}')
    a(f'v_exp_f32 v{t1}, v{t1}')
    a(f'v_add_f32 v{t0}, 1.0, v{t0}')
    a(f'v_add_f32 v{t1}, 1.0, v{t1}')
    a(f'v_rcp_f32 v{t0}, v{t0}')
    a(f'v_rcp_f32 v{t1}, v{t1}')
    a(f'v_mul_f32 v{x0}, v{x0}, v{t0}')
    a(f'v_mul_f32 v{x1}, v{x1}, v{t1}')
    a(f'v_cvt_pk_bf16_f32 v{dst}, v{x0}, v{x1}')

def stats_from_partials(G, a, base, n, mb, rinv, t):
    for k in range(1, n):
        a(f'v_add_f32 v{base}, v{base}, v{base+2*k}')
        a(f'v_add_f32 v{base+1}, v{base+1}, v{base+2*k+1}')
    a(f'v_mul_f32 v{base}, {G.f32(1.0/448)}, v{base}')
    a(f'v_mul_f32 v{base+1}, {G.f32(1.0/448)}, v{base+1}')
    a(f'v_fma_f32 v{base+1}, -v{base}, v{base}, v{base+1}')
    a(f'v_max_f32 v{base+1}, 0, v{base+1}')
    G.ln_scalars(a, base, base + 1, mb, rinv, t)

def gen_k3(G):
    from gen4 import gelu8, gelu_consts
    f32, srd, rnd_bf16, unpack2, kernel = G.f32, G.srd, G.rnd_bf16, G.unpack2, G.kernel
    a = Asm()
    XL = 17920; AT = 35840; ST3 = 52224; LDSZ = 52224 + 256
    pr = lambda r: f'v[{r}:{r+1}]'
    a('s_cmp_ge_u32 s2, 256')
    a('s_cbranch_scc1 K3_END')
    a.stamp(real=True); a.stamp()
    a('s_load_dwordx2 s[4:5], s[0:1], 144')
    a('s_load_dwordx2 s[6:7], s[0:1], 0')
    a('s_and_b32 s3, s2, 7'); a('s_lshl_b32 s3, s3, 4'); a('s_lshr_b32 s8, s2, 4'); a('s_add_u32 s3, s3, s8')
    a('s_bfe_u32 s8, s2, 0x10003')
    a('v_lshrrev_b32 v1, 6, v0')
    a('v_readfirstlane_b32 s9, v1')
    a('v_bfe_u32 v4, v0, 4, 2')
    a('v_and_b32 v5, 15, v0')
    a('s_cmp_lt_u32 s9, 4')
    a('s_cbranch_scc1 K3_LN')
    a('s_sub_u32 s9, s9, 4')
    a('v_subrev_u32 v1, 256, v0')
    a('v_lshrrev_b32 v6, 1, v1')
    a('v_and_b32 v7, 1, v1')
    a('v_lshlrev_b32 v8, 12, v6')
    a('v_lshl_add_u32 v8, v7, 4, v8')
    a('s_lshl_b32 s12, s3, 5')
    a('v_add_u32 v8, s12, v8')
    a(f'v_add_u32 v9, {224*4096}, v8')
    a('v_mul_u32_u24 v10, 40, v6')
    a('v_lshl_add_u32 v10, v7, 4, v10')
    a('s_mul_i32 s13, s3, 14336')
    a('v_lshl_add_u32 v12, v1, 4, s13')
    a('v_mul_u32_u24 v15, 1171, v1')
    a('v_lshrrev_b32 v15, 16, v15')
    a(f'v_mul_u32_u24 v15, {1088-896}, v15')
    a('v_lshl_add_u32 v11, v1, 4, v15')
    a('s_mul_i32 s12, s8, 14'); a('s_lshl_b32 s13, s9, 1'); a('s_add_u32 s12, s12, s13')
    a('s_lshl_b32 s13, s12, 6')
    a('v_lshl_add_u32 v14, v5, 3, s13')
    a('s_mul_i32 s13, s12, 14336')
    a('v_and_b32 v15, 63, v0')
    a('v_lshl_add_u32 v15, v15, 4, s13')
    a('v_add_u32 v13, 7168, v12')
    a('s_waitcnt lgkmcnt(0)')
    a.stamp()
    a(f's_add_u32 s16, s4, {GT}'); a('s_addc_u32 s17, s5, 0')
    a(f's_add_u32 s20, s4, {CS1}'); a('s_addc_u32 s21, s5, 0')
    a(f's_add_u32 s22, s4, {W1P}'); a('s_addc_u32 s23, s5, 0')
    S = 140
    a(f'global_load_dwordx4 v[{S}:{S+3}], v8, s[16:17]')
    a(f'global_load_dwordx4 v[{S+4}:{S+7}], v9, s[16:17]')
    a(f'global_load_dwordx4 v[{S+8}:{S+11}], v12, s[6:7]')
    a(f'global_load_dwordx4 v[{S+12}:{S+15}], v13, s[6:7]')
    W = 24; CSR = 2
    def wl(k):
        s_, jj = k >> 1, k & 1
        r = W + 4*(14*jj + s_)
        off = 14336*jj + 1024*s_
        a(f'buffer_load_dwordx4 v[{r}:{r+3}], v15, s[24:27], s{32 + off//4096} offen offset:{off % 4096}')
    srd(a, 24, 4, 5, W1P, 448*448*2)
    for i in range(7): a(f's_mov_b32 s{32+i}, {4096*i}')
    a('global_load_dwordx2 v[2:3], v14, s[20:21]')
    a('s_barrier')
    NB = 8
    for k in range(NB): wl(k)
    a(f's_waitcnt vmcnt({NB+1})')
    a(f'ds_write_b64 v10, v[{S}:{S+1}]')
    a(f'ds_write_b64 v10, v[{S+2}:{S+3}] offset:8')
    a(f'ds_write_b64 v10, v[{S+4}:{S+5}] offset:8960')
    a(f'ds_write_b64 v10, v[{S+6}:{S+7}] offset:8968')
    a(f'ds_write_b128 v11, v[{S+8}:{S+11}] offset:{XL}')
    a(f'ds_write_b128 v11, v[{S+12}:{S+15}] offset:{XL+8*1088}')
    a('s_waitcnt lgkmcnt(0)')
    a.stamp()
    a('s_barrier')
    for k in range(NB, 28): wl(k)
    a('v_xor_b32 v6, v4, v5')
    a('v_lshlrev_b32 v7, 10, v5')
    a(f'v_add_u32 v7, {AT}, v7')
    for u in range(4):
        a(f'v_xor_b32 v{8+u}, {4*u}, v6')
        a(f'v_lshl_add_u32 v{8+u}, v{8+u}, 4, v7')
    a('v_lshlrev_b32 v12, 4, v4')
    a('s_lshl_b32 s13, s3, 4')
    a('v_lshl_add_u32 v6, v4, 2, s13')
    a('v_mul_u32_u24 v6, 896, v6')
    a('v_lshl_add_u32 v6, v5, 2, v6')
    a('s_lshl_b32 s12, s12, 5')
    a('v_add_u32 v6, s12, v6')
    a(f's_add_u32 s20, s4, {HH}'); a('s_addc_u32 s21, s5, 0')
    a.stamp()
    a('s_barrier')
    a.stamp()
    AF = 136; ACC = 16
    a(f'ds_read_b128 v[160:163], v12 offset:{ST3}')
    a(f'ds_read_b128 v[164:167], v12 offset:{ST3+64}')
    def rd(s_): a(f'ds_read_b128 v[{AF+4*(s_%5)}:{AF+4*(s_%5)+3}], v{8+(s_&3)} offset:{256*(s_>>2)}')
    for s_ in range(5): rd(s_)
    a('s_waitcnt vmcnt(28) lgkmcnt(5)')
    for jj in range(2):
        for r in range(4): a(f'v_mul_f32 v{ACC+4*jj+r}, v{160+r}, v{CSR+jj}')
    for s_ in range(14):
        a(f's_waitcnt vmcnt({26-2*s_}) lgkmcnt({min(4, 13-s_)})')
        for jj in range(2):
            w = W + 4*(14*jj + s_)
            a(f'v_mfma_f32_16x16x32_bf16 v[{ACC+4*jj}:{ACC+4*jj+3}], v[{AF+4*(s_%5)}:{AF+4*(s_%5)+3}], v[{w}:{w+3}], v[{ACC+4*jj}:{ACC+4*jj+3}]')
        if s_ + 5 < 14: rd(s_ + 5)
    a.stamp()
    gelu_consts(G, a, 24)
    gelu8(G, a, ACC, ACC + 4, 164, 32, 24, 40)
    for r in range(4): a(f'global_store_dword v6, v{40+r}, s[20:21] offset:{896*r}')
    a('s_waitcnt vmcnt(0)') if asmlib.STAMPS else None
    a.stamp_dump(2, 4, vt=(150, 151))
    a('s_endpgm')
    a.label('K3_LN')
    a.nst = 2 if asmlib.STAMPS else 0
    a('v_and_b32 v2, 3, v0')
    a('v_bfe_u32 v3, v0, 2, 2')
    a('v_lshlrev_b32 v11, 6, v4')
    a('v_lshl_add_u32 v11, v3, 4, v11')
    X, GG, CB, SB, T = 16, 30, 44, 72, 100
    a('s_waitcnt lgkmcnt(0)')
    a.stamp()
    a(f's_add_u32 s14, s4, {MOD+3*1792}'); a('s_addc_u32 s15, s5, 0')
    a(f's_add_u32 s16, s4, {MOD+6*1792}'); a('s_addc_u32 s17, s5, 0')
    for i in range(7):
        a(f'global_load_dwordx4 v[{SB+4*i}:{SB+4*i+3}], v11, s[14:15] offset:{256*i}')
        a(f'global_load_dwordx4 v[{CB+4*i}:{CB+4*i+3}], v11, s[16:17] offset:{256*i}')
    a('s_barrier')
    a('v_lshlrev_b32 v6, 4, v4')
    a('v_lshl_add_u32 v6, v2, 2, v6')
    a('v_add_u32 v6, v6, v3')
    a('v_mul_u32_u24 v6, 40, v6')
    a('s_lshl_b32 s12, s9, 3')
    a('v_add_u32 v6, s12, v6')
    a('s_lshl_b32 s12, s9, 2')
    a('v_add_u32 v12, s12, v2')
    a('v_mul_u32_u24 v8, 1088, v12')
    a('v_lshrrev_b32 v9, 1, v11')
    a('v_add_u32 v8, v8, v9')
    a('v_mov_b32 v15, 0x3f803f80')
    a('v_lshrrev_b32 v13, 1, v3')
    a('v_lshl_add_u32 v13, v4, 1, v13')
    a('v_xor_b32 v13, v13, v12')
    a('v_lshlrev_b32 v13, 4, v13')
    a('v_lshl_add_u32 v13, v12, 10, v13')
    a('v_and_b32 v14, 1, v3')
    a('v_lshl_add_u32 v13, v14, 3, v13')
    a(f'v_add_u32 v13, {AT}, v13')
    a('v_xor_b32 v14, 128, v13')
    a('v_lshlrev_b32 v10, 2, v12')
    a('v_and_b32 v7, 63, v0')
    a('v_cmp_gt_u32 s[28:29], 4, v7')
    a.stamp()
    a('s_barrier')
    a.stamp()
    for i in range(7):
        a(f'ds_read_b64_tr_b16 v[{GG+2*i}:{GG+2*i+1}], v6 offset:{2560*i}')
        a(f'ds_read_b64 v[{X+2*i}:{X+2*i+1}], v8 offset:{XL+128*i}')
    Q = range(14)
    P = 128
    for q in Q:
        if q % 2 == 0: a(f's_waitcnt lgkmcnt({12-q})')
        unpack2(a, T+2*q, T+2*q+1, X+q); unpack2(a, P, P+1, GG+q)
        a(f'v_pk_add_f32 {pr(T+2*q)}, {pr(T+2*q)}, {pr(P)}')
    for q in Q: a(f'v_cvt_pk_bf16_f32 v{X+q}, v{T+2*q}, v{T+2*q+1}')
    def stats(src, mb, rinv):
        a(f'v_dot2_f32_bf16 v142, v{src}, v15, 0')
        a(f'v_dot2_f32_bf16 v143, v{src}, v{src}, 0')
        for q in range(1, 14):
            a(f'v_dot2_f32_bf16 v142, v{src+q}, v15, v142')
            a(f'v_dot2_f32_bf16 v143, v{src+q}, v{src+q}, v143')
        for ro in (4, 8):
            for r in (142, 143): a(f'v_add_f32_dpp v{r}, v{r}, v{r} row_ror:{ro} row_mask:0xf bank_mask:0xf')
        for sw in ('v_permlane32_swap_b32', 'v_permlane16_swap_b32'):
            a('v_mov_b32 v144, v142'); a('v_mov_b32 v145, v143')
            a(f'{sw} v142, v144'); a(f'{sw} v143, v145')
            a('v_add_f32 v142, v142, v144'); a('v_add_f32 v143, v143, v145')
        stats_from_partials(G, a, 142, 1, mb, rinv, 148)
    for i in range(7): a(f'ds_write_b64 v8, v[{X+2*i}:{X+2*i+1}] offset:{XL+128*i}')
    stats(X, 146, 150)
    a('v_mov_b32 v147, v146'); a('v_mov_b32 v151, v150')
    for q in Q: unpack2(a, T+2*q, T+2*q+1, X+q)
    a('s_waitcnt vmcnt(0)')
    for q in Q: a(f'v_pk_add_f32 {pr(T+2*q)}, {pr(T+2*q)}, v[146:147] neg_lo:[0,1] neg_hi:[0,1]')
    for q in Q: a(f'v_pk_mul_f32 {pr(CB+2*q)}, {pr(CB+2*q)}, v[150:151]')
    for q in Q: a(f'v_pk_fma_f32 {pr(T+2*q)}, {pr(T+2*q)}, {pr(CB+2*q)}, {pr(SB+2*q)}')
    for q in Q: a(f'v_cvt_pk_bf16_f32 v{GG+q}, v{T+2*q}, v{T+2*q+1}')
    for i in range(7): a(f'ds_write_b64 v{13 + (i&1)}, v[{GG+2*i}:{GG+2*i+1}] offset:{256*(i>>1)}')
    stats(GG, 146, 150)
    a('v_sub_f32 v146, 0, v146')
    a('s_and_saveexec_b64 s[22:23], s[28:29]')
    a(f'ds_write_b32 v10, v146 offset:{ST3}')
    a(f'ds_write_b32 v10, v150 offset:{ST3+64}')
    a('s_mov_b64 exec, s[22:23]')
    a('s_waitcnt lgkmcnt(0)')
    a.stamp()
    a('s_barrier')
    a.stamp()
    a('s_mul_i32 s12, s8, 28')
    a('s_mul_i32 s13, s3, 14336')
    srd(a, 16, 4, 5, X1, ACT_BYTES)
    srd(a, 20, 4, 5, H2, ACT_BYTES)
    for it in range(2):
        b = 16 + 8*it
        a(f'v_add_u32 v2, {256*it}, v0')
        a('v_mul_u32_u24 v3, 2341, v2')
        a('v_lshrrev_b32 v3, 16, v3')
        a('v_mul_u32_u24 v4, 28, v3')
        a('v_sub_u32 v4, v2, v4')
        a('v_add_u32 v4, s12, v4')
        a('v_and_b32 v9, 15, v3')
        a('v_mul_u32_u24 v5, 1088, v9')
        a('v_lshl_add_u32 v5, v4, 4, v5')
        a(f'ds_read_b128 v[{b}:{b+3}], v5 offset:{XL}')
        a('v_xor_b32 v6, v4, v9')
        a('v_lshlrev_b32 v6, 4, v6')
        a('v_lshl_add_u32 v6, v9, 10, v6')
        a(f'ds_read_b128 v[{b+4}:{b+7}], v6 offset:{AT}')
        a('v_mul_u32_u24 v7, 896, v3')
        a('v_lshl_add_u32 v7, v4, 4, v7')
        a(f'v_add_u32 v{40+it}, s13, v7')
    a('v_cmp_gt_u32 vcc, 16, v3')
    a('v_mov_b32 v7, 0x80000000')
    a('v_cndmask_b32 v41, v7, v41, vcc')
    for it in range(2):
        b = 16 + 8*it
        a(f's_waitcnt lgkmcnt({2-2*it})')
        a(f'buffer_store_dwordx4 v[{b}:{b+3}], v{40+it}, s[16:19], 0 offen')
        a(f'buffer_store_dwordx4 v[{b+4}:{b+7}], v{40+it}, s[20:23], 0 offen')
    a('s_waitcnt vmcnt(0)') if asmlib.STAMPS else None
    a.stamp_dump(2, 4, vt=(150, 151))
    a.label('K3_END')
    a('s_endpgm')
    kernel('ln_gemm1_kernel', (256, 1, 1), (704, 1, 1), LDSZ, 168, 48, a, keepv=True)

def gen_all(G):
    gen_k3(G)
    import gen4
    gen4.gen_all(G)
```

```python
import asmlib, os
from asmlib import Asm
from layout import *
from gen3 import gelu_pair, stats_from_partials, GC0

def exch8(a, acc, lo, hi, t, mask):
    for k in range(2):
        a(f'v_cndmask_b32 v{t+k}, v{acc+k}, v{acc+2+k}, {mask}')
    for k in range(2):
        a(f'v_mov_b32_dpp v{t+2+k}, v{t+k} row_ror:8 row_mask:0xf bank_mask:0xf')
    for k in range(2):
        a(f'v_cndmask_b32 v{lo+2*k}, v{t+2+k}, v{acc+k}, {mask}')
        a(f'v_cndmask_b32 v{lo+2*k+1}, v{acc+2+k}, v{t+2+k}, {mask}')

def dma_lane(a, row, gsw, lane, t):
    a(f'v_lshrrev_b32 v{row}, 2, v{lane}')
    a(f'v_lshrrev_b32 v{t}, 4, v{lane}')
    a(f'v_sub_u32 v{t}, 0, v{t}')
    a(f'v_xor_b32 v{gsw}, v{t}, v{lane}')
    a(f'v_and_b32 v{gsw}, 3, v{gsw}')

def frag_rd_addr(a, d, tok, g, t):
    a(f'v_lshrrev_b32 v{t}, 2, v{tok}')
    a(f'v_sub_u32 v{t}, 0, v{t}')
    a(f'v_xor_b32 v{t}, v{t}, v{g}')
    a(f'v_and_b32 v{t}, 3, v{t}')
    a(f'v_lshlrev_b32 v{t}, 4, v{t}')
    a(f'v_lshl_add_u32 v{d}, v{tok}, 6, v{t}')

def gen_k4(G):
    f32, srd, rnd_bf16, unpack2, kernel = G.f32, G.srd, G.rnd_bf16, G.unpack2, G.kernel
    a = Asm()
    ST = 32768; LDSZ = 32768 + 2048
    a('s_cmp_ge_u32 s2, 256')
    a('s_cbranch_scc1 K4_END')
    a.stamp(real=True); a.stamp()
    a('s_load_dwordx2 s[4:5], s[0:1], 144')
    a('s_and_b32 s3, s2, 7'); a('s_lshl_b32 s3, s3, 3'); a('s_lshr_b32 s8, s2, 5'); a('s_add_u32 s3, s3, s8')
    a('s_bfe_u32 s8, s2, 0x20003')
    a('s_lshl_b32 s3, s3, 5')
    a('v_lshrrev_b32 v1, 6, v0')
    a('v_readfirstlane_b32 s9, v1')
    a('v_mul_u32_u24 v2, 1171, v0')
    a('v_lshrrev_b32 v2, 16, v2')
    a('v_mul_u32_u24 v3, 56, v2')
    a('v_sub_u32 v3, v0, v3')
    a('v_mul_u32_u24 v4, 4682, v3')
    a('v_lshrrev_b32 v4, 16, v4')
    a('v_lshrrev_b32 v5, 1, v4')
    a('v_add_u32 v5, 1, v5')
    a('v_and_b32 v6, 1, v4')
    a('v_lshl_add_u32 v6, v6, 1, -1')
    a('v_mul_i32_i24 v5, v5, v6')
    a('v_add3_u32 v5, v5, v2, s3')
    a('v_mul_i32_i24 v5, 896, v5')
    a('v_lshl_add_u32 v5, v3, 4, v5')
    a('v_xor_b32 v6, v3, v2')
    a('v_lshlrev_b32 v6, 4, v6')
    a('v_lshl_add_u32 v6, v2, 10, v6')
    a('v_xor_b32 v7, 128, v6')
    a('v_and_b32 v8, 15, v0')
    a('v_bfe_u32 v9, v0, 4, 2')
    a('s_mul_i32 s10, s8, 7'); a('s_add_u32 s10, s10, s9')
    a('v_lshrrev_b32 v10, 3, v8')
    a('v_lshlrev_b32 v10, 1, v10')
    a('v_lshl_add_u32 v13, v9, 2, v10')
    a('v_add_u32 v10, s3, v13')
    a('v_mul_u32_u24 v10, 896, v10')
    a('v_and_b32 v11, 7, v8')
    a('v_lshl_add_u32 v10, v11, 2, v10')
    a('s_lshl_b32 s11, s10, 5')
    a('v_add_u32 v10, s11, v10')
    a('v_add_u32 v11, 14336, v10')
    a('s_mul_i32 s11, s10, 14336')
    a('v_and_b32 v12, 63, v0')
    a('v_lshl_add_u32 v12, v12, 4, s11')
    a('s_waitcnt lgkmcnt(0)')
    a.stamp()
    srd(a, 16, 4, 5, HH, ACT_BYTES)
    for i in range(4):
        if i: a('v_add_u32 v5, 7168, v5')
        a(f'buffer_load_dwordx4 v[{16+4*i}:{19+4*i}], v5, s[16:19], 0 offen')
    a(f's_add_u32 s22, s4, {W2P}'); a('s_addc_u32 s23, s5, 0')
    a(f's_add_u32 s20, s4, {H2}'); a('s_addc_u32 s21, s5, 0')
    a('s_barrier')
    W = 40
    for k in range(14):
        if k and k % 4 == 0: a('v_add_u32 v12, 4096, v12')
        a(f'global_load_dwordx4 v[{W+4*k}:{W+4*k+3}], v12, s[22:23] offset:{1024*(k&3)}')
    for mt in range(2):
        for k in range(2): a(f'global_load_dword v{32+2*mt+k}, v{10+mt}, s[20:21] offset:{896*k}')
    a('v_xor_b32 v15, v9, v8')
    a('v_lshlrev_b32 v14, 10, v8')
    for u in range(4):
        a(f'v_xor_b32 v{96+u}, {4*u}, v15')
        a(f'v_lshl_add_u32 v{96+u}, v{96+u}, 4, v14')
    for r in range(8): a(f'v_mov_b32 v{100+r}, 0')
    a('v_cmp_gt_u32 s[26:27], 8, v8')
    for i in range(4):
        a(f's_waitcnt vmcnt({21-i})')
        a(f'ds_write_b128 v{6+(i&1)}, v[{16+4*i}:{19+4*i}] offset:{8192*i}')
    a('s_waitcnt lgkmcnt(0)')
    a.stamp()
    a('s_barrier')
    a.stamp()
    AF = 108
    for s in range(14):
        for mt in range(2):
            r = AF + 8*s + 4*mt
            a(f'ds_read_b128 v[{r}:{r+3}], v{96+(s&3)} offset:{256*(s>>2)+16384*mt}')
    for s in range(14):
        a(f's_waitcnt vmcnt({17-s}) lgkmcnt({min(15, 26-2*s)})')
        for mt in range(2):
            r = AF + 8*s + 4*mt
            a(f'v_mfma_f32_16x16x32_bf16 v[{100+4*mt}:{103+4*mt}], v[{r}:{r+3}], v[{W+4*s}:{W+4*s+3}], v[{100+4*mt}:{103+4*mt}]')
    a.stamp()
    a(f's_add_u32 s20, s4, {X1P}'); a('s_addc_u32 s21, s5, 0')
    a('v_mov_b32 v15, 0x3f803f80')
    a('s_waitcnt vmcnt(0)')
    for mt in range(2): exch8(a, 100 + 4*mt, 40 + 4*mt, None, 16, 's[26:27]')
    for q in range(4): unpack2(a, 52+2*q, 53+2*q, 32+q)
    for q in range(4): a(f'v_pk_add_f32 v[{40+2*q}:{41+2*q}], v[{40+2*q}:{41+2*q}], v[{52+2*q}:{53+2*q}]')
    for q in range(4):
        a(f'v_cvt_pk_bf16_f32 v{48+q}, v{40+2*q}, v{41+2*q}')
    for q in range(4):
        a(f'global_store_dword v{10+(q>>1)}, v{48+q}, s[20:21] offset:{896*(q&1)}')
        a(f'v_dot2_f32_bf16 v{56+2*q}, v{48+q}, v15, 0')
        a(f'v_dot2_f32_bf16 v{57+2*q}, v{48+q}, v{48+q}, 0')
    for dp in ('quad_perm:[1,0,3,2]', 'quad_perm:[2,3,0,1]', 'row_half_mirror'):
        for r in range(8): a(f'v_add_f32_dpp v{56+r}, v{56+r}, v{56+r} {dp} row_mask:0xf bank_mask:0xf')
    a('s_lshl_b32 s11, s9, 3')
    a('v_lshl_add_u32 v13, v13, 6, s11')
    a('v_and_b32 v14, 7, v0')
    a('v_cmp_eq_u32 vcc, 0, v14')
    a('s_and_saveexec_b64 s[24:25], vcc')
    for q in range(4): a(f'ds_write_b64 v13, v[{56+2*q}:{57+2*q}] offset:{ST+1024*(q>>1)+64*(q&1)}')
    a('s_mov_b64 exec, s[24:25]')
    a('s_waitcnt lgkmcnt(0)')
    a('s_barrier')
    a('v_cmp_gt_u32 vcc, 32, v0')
    a('s_and_saveexec_b64 s[24:25], vcc')
    a('s_cbranch_execz K4_DONE')
    a('v_lshlrev_b32 v13, 6, v0')
    for k in range(4): a(f'ds_read_b128 v[{16+4*k}:{19+4*k}], v13 offset:{ST+16*k}')
    a('v_add_u32 v14, s3, v0')
    a('v_lshlrev_b32 v14, 5, v14')
    a('s_lshl_b32 s11, s8, 3')
    a('v_add_u32 v14, s11, v14')
    a(f's_add_u32 s20, s4, {STAT}'); a('s_addc_u32 s21, s5, 0')
    a('s_waitcnt lgkmcnt(0)')
    for k in range(1, 7):
        a(f'v_add_f32 v16, v16, v{16+2*k}'); a(f'v_add_f32 v17, v17, v{17+2*k}')
    a('global_store_dwordx2 v14, v[16:17], s[20:21]')
    a.label('K4_DONE')
    a('s_waitcnt vmcnt(0)') if asmlib.STAMPS else None
    a.stamp_dump(3, 4)
    a.label('K4_END')
    a('s_endpgm')
    kernel('gemm2_kernel', (256, 1, 1), (448, 1, 1), LDSZ, 220, 40, a)

def gelu8(G, a, A0, A1, RI, T, C, dst, NMr=None, CS=None, nopk=False):
    P = [A0, A0 + 2, A1, A1 + 2]
    pr = lambda r: f'v[{r}:{r+1}]'
    def op2(kind, d, x, y, z=None):
        if not nopk:
            a(f'v_pk_{kind}_f32 {pr(d)}, {pr(x)}, {pr(y)}' + (f', {pr(z)}' if z is not None else ''))
        else:
            for k in range(2): a(f'v_{kind}_f32 v{d+k}, v{x+k}, v{y+k}' + (f', v{z+k}' if z is not None else ''))
    if NMr is not None:
        for i, p in enumerate(P): op2('fma', p, NMr + 2*(i&1), CS + 2*(i>>1), p)
    for i, p in enumerate(P): op2('mul', p, p, RI + 2*(i&1))
    for i, p in enumerate(P): op2('mul', T+2*i, p, p)
    for i, p in enumerate(P): op2('fma', T+2*i, T+2*i, C, C+2)
    for i, p in enumerate(P): op2('mul', T+2*i, T+2*i, p)
    for i in range(8): a(f'v_exp_f32 v{T+i}, v{T+i}')
    for i, p in enumerate(P): op2('add', T+2*i, T+2*i, C+4)
    for i in range(8): a(f'v_rcp_f32 v{T+i}, v{T+i}')
    for i, p in enumerate(P): op2('mul', p, p, T+2*i)
    for r in range(4): a(f'v_cvt_pk_bf16_f32 v{dst+r}, v{A0+r}, v{A1+r}')

def gelu_consts(G, a, C):
    from gen3 import GC1
    for i, v in enumerate((GC1, GC1, GC0, GC0, 1.0, 1.0)): a(f'v_mov_b32 v{C+i}, {G.f32(v)}')

class Cap:
    def __init__(self): self.l = []
    def __call__(self, x): self.l.append(x)

def gen_k5(G):
    f32, srd, rnd_bf16, unpack2, kernel = G.f32, G.srd, G.rnd_bf16, G.unpack2, G.kernel
    a = Asm()
    AB = 114688; NSA = 5; RS = AB + NSA * 8192; LDSZ = RS + 1024; NST = 14
    a('s_cmp_ge_u32 s2, 224')
    a('s_cbranch_scc1 K5_END')
    a.stamp(real=True); a.stamp()
    a('s_load_dwordx2 s[4:5], s[0:1], 144')
    a('s_lshr_b32 s6, s2, 3')
    a('s_cmp_ge_u32 s6, 14'); a('s_cselect_b32 s7, 1, 0')
    a('s_mul_i32 s8, s7, 14'); a('s_sub_u32 s8, s6, s8')
    a('s_and_b32 s3, s2, 7'); a('s_lshl_b32 s3, s3, 1'); a('s_add_u32 s3, s3, s7')
    a('s_lshl_b32 s3, s3, 7')
    a('v_lshrrev_b32 v1, 6, v0')
    a('v_readfirstlane_b32 s9, v1')
    a('v_and_b32 v2, 15, v0'); a('v_bfe_u32 v3, v0, 4, 2'); a('v_and_b32 v4, 63, v0')
    a('s_cmp_lt_u32 s9, 4')
    a('s_cbranch_scc1 K5_COMP')
    a('s_sub_u32 s9, s9, 4')
    a('v_lshrrev_b32 v5, 3, v4')
    a('v_and_b32 v6, 6, v5')
    a('v_xor_b32 v6, v6, v4')
    a('v_and_b32 v6, 7, v6')
    a('s_lshl_b32 s10, s9, 4'); a('s_add_u32 s10, s10, s3')
    a('v_add_u32 v5, s10, v5')
    a('v_mul_u32_u24 v5, 896, v5')
    a('v_lshl_add_u32 v8, v6, 4, v5')
    a('v_add_u32 v9, 7168, v8'); a('v_add_u32 v10, 57344, v8'); a('v_add_u32 v11, 57344+7168, v8')
    a('s_lshl_b32 s10, s8, 3'); a('s_lshl_b32 s11, s9, 1'); a('s_add_u32 s10, s10, s11')
    a('s_mul_i32 s11, s10, 14336')
    a('v_lshl_add_u32 v12, v4, 4, s11')
    a('v_add_u32 v13, 14336, v12')
    a('s_lshl_b32 s12, s9, 12')
    a('s_lshl_b32 s15, s9, 11')
    a('s_waitcnt lgkmcnt(0)')
    srd(a, 16, 4, 5, X1P, ACT_BYTES)
    srd(a, 28, 4, 5, W3P, 448*1792*2)
    cnt = []
    def stage(q):
        h, p = q // 7, q % 7
        a(f's_mov_b32 s14, {128*p}')
        for b in range(2):
            a(f's_add_u32 m0, s15, {AB + (q % NSA)*8192 + 1024*b}')
            a(f'buffer_load_dwordx4 v{8+2*h+b}, s[16:19], s14 offen lds')
        n = 2
        if h == 0:
            a(f's_mov_b32 s13, {2048*p}')
            for e in range(2):
                for jj in range(2):
                    a(f's_add_u32 m0, s12, {16384*p + 1024*(2*e+jj) - 1024*e}')
                    a(f'buffer_load_dwordx4 v{12+jj}, s[28:31], s13 offen offset:{1024*e} lds')
            n = 6
        cnt.append(n)
    LOOK = 4
    for q in range(LOOK): stage(q)
    for b in range(NST):
        a(f's_waitcnt vmcnt({sum(cnt[b+1:])})')
        a('s_barrier')
        if len(cnt) < NST: stage(len(cnt))
    a('s_endpgm')
    a.label('K5_COMP')
    a('s_lshl_b32 s10, s8, 3'); a('s_lshl_b32 s11, s9, 1'); a('s_add_u32 s10, s10, s11')
    a('s_lshl_b32 s11, s10, 6')
    a('v_lshl_add_u32 v8, v2, 3, s11')
    a('v_add_u32 v9, s3, v0')
    a('v_lshlrev_b32 v9, 5, v9')
    a('v_cmp_gt_u32 vcc, 128, v0')
    a('v_mov_b32 v10, 0x80000000')
    a('v_cndmask_b32 v9, v10, v9, vcc')
    a('s_waitcnt lgkmcnt(0)')
    a.stamp()
    srd(a, 20, 4, 5, STAT, 65536)
    a('buffer_load_dwordx4 v[16:19], v9, s[20:23], 0 offen')
    a('buffer_load_dwordx4 v[20:23], v9, s[20:23], 0 offen offset:16')
    a(f's_add_u32 s24, s4, {CS3}'); a('s_addc_u32 s25, s5, 0')
    a('global_load_dwordx2 v[24:25], v8, s[24:25]')
    a('v_and_b32 v10, 6, v2')
    a('v_xor_b32 v10, v10, v3')
    a('v_lshlrev_b32 v10, 4, v10')
    a('v_lshl_add_u32 v10, v2, 7, v10')
    a(f'v_add_u32 v10, {AB}, v10')
    a('v_xor_b32 v11, 64, v10')
    a('s_lshl_b32 s11, s9, 12')
    a('v_lshl_add_u32 v14, v4, 4, s11')
    a('v_add_u32 v15, 65536, v14')
    a('v_lshl_add_u32 v12, v3, 2, s3')
    a('v_mul_u32_u24 v12, 3584, v12')
    a('v_lshl_add_u32 v12, v2, 2, v12')
    a('s_lshl_b32 s11, s10, 5')
    a('v_add_u32 v12, s11, v12')
    a('v_add_u32 v13, 7168, v12')
    a(f's_add_u32 s24, s4, {HM}'); a('s_addc_u32 s25, s5, 0')
    gelu_consts(G, a, 26)
    ACC = 32; FB = 96; ST_ = 192; TT = 224
    for r in range(64): a(f'v_mov_b32 v{ACC+r}, 0')
    a.stamp()
    def rd(q, c=None):
        c = c or a
        p = q % 7; fb = FB + 48*(q & 1)
        for e in range(2):
            for jj in range(2): c(f'ds_read_b128 v[{fb+32+8*e+4*jj}:{fb+35+8*e+4*jj}], v{14 + (p >> 2)} offset:{16384*(p&3) + 1024*(2*e+jj)}')
            for m in range(4): c(f'ds_read_b128 v[{fb+16*e+4*m}:{fb+16*e+4*m+3}], v{10+e} offset:{(q % NSA)*8192 + 2048*m}')
    def rdstats(h):
        for m in range(4):
            a(f'ds_read_b128 v[{ST_+8*m}:{ST_+8*m+3}], v9 offset:{64*(4*h+m)}')
            a(f'ds_read_b128 v[{ST_+8*m+4}:{ST_+8*m+7}], v9 offset:{512+64*(4*h+m)}')
    a('s_barrier')
    a.stamp()
    rd(0)
    def epi(c, m, nopk):
        d = TT + 16 + 4*(m & 1)
        gelu8(G, c, ACC + 8*m, ACC + 8*m + 4, ST_ + 8*(m & 3) + 4, TT + 8*(m & 1), 26, d, ST_ + 8*(m & 3), 20, nopk)
        for r in range(4): c(f'global_store_dword v{12+(r>>1)}, v{d+r}, s[24:25] offset:{3584*(r&1)}')
        if m < 7: c('v_add_u32 v12, 57344, v12'); c('v_add_u32 v13, 57344, v13')
    fill = Cap()
    NFILL = int(os.environ.get('NFILL', '3'))
    for m in range(NFILL): epi(fill, m, True)
    fl = fill.l
    def filler(budget):
        while fl and budget > 0:
            x = fl.pop(0); a(x)
            budget -= 8 if x.startswith(('v_exp', 'v_rcp')) else 4
    for q in range(NST):
        h = q // 7; fb = FB + 48*(q & 1)
        a('s_waitcnt lgkmcnt(0)')
        rc = Cap()
        if q + 1 < NST:
            a('s_barrier')
            rd(q + 1, rc)
        if q == 5: rdstats(0)
        for e in range(2):
            for m in range(4):
                for jj in range(2):
                    t = ACC + 8*(4*h + m) + 4*jj
                    a(f'v_mfma_f32_16x16x32_bf16 v[{t}:{t+3}], v[{fb+16*e+4*m}:{fb+16*e+4*m+3}], v[{fb+32+8*e+4*jj}:{fb+35+8*e+4*jj}], v[{t}:{t+3}]')
                    if rc.l: a(rc.l.pop(0))
                    if h == 1 and not (q == 7 and e == 0 and m < 2): filler(8)
        if q == 2:
            a('s_waitcnt vmcnt(0)')
            stats_from_partials(G, a, 16, 4, TT, TT+1, TT+2)
            a(f'v_sub_f32 v{TT}, 0, v{TT}')
            a('v_lshlrev_b32 v9, 2, v0')
            a('s_and_saveexec_b64 s[26:27], vcc')
            a(f'v_add_u32 v9, {RS}, v9')
            a(f'ds_write_b32 v9, v{TT}')
            a(f'ds_write_b32 v9, v{TT+1} offset:512')
            a('s_mov_b64 exec, s[26:27]')
            a('v_lshlrev_b32 v9, 4, v3')
            a(f'v_add_u32 v9, {RS}, v9')
            a('v_mov_b32 v20, v24'); a('v_mov_b32 v21, v24'); a('v_mov_b32 v22, v25'); a('v_mov_b32 v23, v25')
        if q in (6, 13): a.stamp()
    filler(1 << 30)
    for m in range(NFILL, 4): epi(a, m, False)
    rdstats(1)
    a('s_waitcnt lgkmcnt(0)')
    for m in range(4, 8): epi(a, m, False)
    a.stamp()
    a('s_waitcnt vmcnt(0)') if asmlib.STAMPS else None
    a.stamp_dump(4, 4)
    a.label('K5_END')
    a('s_endpgm')
    kernel('gemm3_kernel', (224, 1, 1), (512, 1, 1), LDSZ, 248, 40, a)

def gen_k6(G):
    f32, srd, rnd_bf16, unpack2, kernel = G.f32, G.srd, G.rnd_bf16, G.unpack2, G.kernel
    a = Asm()
    NSLOT = 5; SLOT = 32768; LDSZ = NSLOT * SLOT; NST = 14
    pr = lambda r: f'v[{r}:{r+1}]'
    a('s_cmp_ge_u32 s2, 224')
    a('s_cbranch_scc1 K6_END')
    a.stamp(real=True); a.stamp()
    a('s_load_dwordx2 s[4:5], s[0:1], 128')
    a('s_load_dwordx2 s[8:9], s[0:1], 144')
    a('s_lshr_b32 s10, s2, 3')
    a('s_mul_i32 s11, s10, 37'); a('s_lshr_b32 s11, s11, 8')
    a('s_mul_i32 s12, s11, 7'); a('s_sub_u32 s12, s10, s12')
    a('s_and_b32 s10, s2, 7'); a('s_lshl_b32 s10, s10, 2'); a('s_add_u32 s3, s10, s11')
    a('s_lshl_b32 s3, s3, 6')
    a('v_lshrrev_b32 v1, 6, v0')
    a('v_readfirstlane_b32 s13, v1')
    a('v_and_b32 v2, 15, v0'); a('v_bfe_u32 v3, v0, 4, 2'); a('v_and_b32 v4, 63, v0')
    a('s_cmp_lt_u32 s13, 4')
    a('s_cbranch_scc1 K6_COMP')
    a('s_sub_u32 s13, s13, 4')
    a('s_lshl_b32 s14, s11, 1'); a('s_add_u32 s14, s14, s12'); a('s_lshl_b32 s14, s14, 1')
    a('s_cmp_ge_u32 s14, 14'); a('s_cselect_b32 s15, 14, 0'); a('s_sub_u32 s14, s14, s15')
    if not int(os.environ.get('ROT', '0')): a('s_mov_b32 s14, 0')
    a('v_lshrrev_b32 v5, 3, v4')
    a('v_and_b32 v6, 6, v5')
    a('v_xor_b32 v6, v6, v4')
    a('v_and_b32 v6, 7, v6')
    a('s_lshl_b32 s10, s13, 4'); a('s_add_u32 s10, s10, s3')
    a('v_add_u32 v5, s10, v5')
    a('v_mul_u32_u24 v5, 3584, v5')
    a('v_lshl_add_u32 v5, v6, 4, v5')
    a('v_add_u32 v14, 28672, v5')
    a('s_lshl_b32 s10, s12, 2'); a('s_add_u32 s10, s10, s13')
    a('s_mul_i32 s11, s10, 57344')
    a('v_lshl_add_u32 v6, v4, 4, s11')
    a('s_lshl_b32 s24, s13, 11')
    a('s_lshl_b32 s25, s13, 12'); a('s_add_u32 s25, s25, 16384')
    a('s_waitcnt lgkmcnt(0)')
    srd(a, 16, 8, 9, HM, 2048*3584)
    srd(a, 20, 8, 9, W4P, 448*1792*2)
    def stage(p):
        sl = (p % NSLOT) * SLOT
        a('s_lshl_b32 s26, s14, 8'); a('s_lshl_b32 s27, s14, 12')
        for kp in range(2):
            for h in range(2):
                a(f's_add_u32 m0, s24, {sl + 8192*kp + 1024*h - 128*kp}')
                a(f'buffer_load_dwordx4 v{(5, 14)[h]}, s[16:19], s26 offen offset:{128*kp} lds')
        for ks in range(4):
            a(f's_add_u32 m0, s25, {sl}')
            a(f'buffer_load_dwordx4 v6, s[20:23], s27 offen offset:{1024*ks} lds')
        a('s_add_u32 s14, s14, 1'); a('s_cmp_eq_u32 s14, 14'); a('s_cselect_b32 s14, 0, s14')
    LOOK = int(os.environ.get('K6LOOK', '4'))
    for p in range(LOOK): stage(p)
    issued = LOOK
    for b in range(NST):
        a(f's_waitcnt vmcnt({8*(issued - 1 - b)})')
        a('s_barrier')
        if issued < NST: stage(issued); issued += 1
    a('s_endpgm')
    a.label('K6_COMP')
    a('s_lshl_b32 s10, s12, 2'); a('s_add_u32 s10, s10, s13')
    a('v_lshrrev_b32 v7, 3, v2')
    a('v_lshlrev_b32 v7, 1, v7')
    a('v_lshl_add_u32 v7, v3, 2, v7')
    a('v_add_u32 v7, s3, v7')
    a('v_mul_u32_u24 v7, 896, v7')
    a('v_and_b32 v8, 7, v2')
    a('v_lshl_add_u32 v7, v8, 2, v7')
    a('s_lshl_b32 s11, s10, 5')
    a('v_add_u32 v7, s11, v7')
    a('s_lshl_b32 s11, s10, 6')
    a('v_lshl_add_u32 v8, v8, 3, s11')
    a('v_and_b32 v9, 6, v2')
    a('v_xor_b32 v9, v9, v3')
    a('v_lshlrev_b32 v9, 4, v9')
    a('v_lshl_add_u32 v9, v2, 7, v9')
    a('v_xor_b32 v10, 64, v9')
    a('s_lshl_b32 s11, s13, 12'); a('s_add_u32 s11, s11, 16384')
    a('v_lshl_add_u32 v11, v4, 4, s11')
    for i in range(1, 3):
        for k in range(3): a(f'v_add_u32 v{9+3*i+k}, {65536*i}, v{9+k}')
    a('v_cmp_gt_u32 s[28:29], 8, v2')
    for r in range(16): a(f'v_mov_b32 v{32+r}, 0')
    a('s_waitcnt lgkmcnt(0)')
    a.stamp()
    a(f's_add_u32 s22, s8, {X1P}'); a('s_addc_u32 s23, s9, 0')
    a(f's_add_u32 s24, s8, {X1}'); a('s_addc_u32 s25, s9, 0')
    a(f's_add_u32 s26, s8, {MOD+5*1792}'); a('s_addc_u32 s27, s9, 0')
    AF = 64
    def rd(p, c=None):
        c = c or a
        sl = p % NSLOT
        b3 = 9 + 3*(sl >> 1); so = (sl & 1) * SLOT
        for ks in range(4):
            r = AF + 80*(p & 1) + 20*ks
            c(f'ds_read_b128 v[{r+16}:{r+19}], v{b3+2} offset:{so + 1024*ks}')
            for m in range(4): c(f'ds_read_b128 v[{r+4*m}:{r+4*m+3}], v{b3 + (ks & 1)} offset:{so + 8192*(ks>>1) + 2048*m}')
    a('s_barrier')
    a.stamp()
    rd(0)
    for p in range(NST):
        a('s_waitcnt lgkmcnt(0)')
        rc = Cap()
        if p + 1 < NST:
            a('s_barrier')
            rd(p + 1, rc)
        if p == 8:
            a('v_mov_b32 v18, v7')
            for mt in range(4):
                if mt: a('v_add_u32 v18, 14336, v18')
                for k in range(2):
                    a(f'global_load_dword v{224+2*mt+k}, v18, s[22:23] offset:{896*k}')
                    a(f'global_load_dword v{232+2*mt+k}, v18, s[24:25] offset:{896*k}')
            a('global_load_dwordx2 v[240:241], v8, s[26:27]')
        for ks in range(4):
            r = AF + 80*(p & 1) + 20*ks
            for m in range(4):
                a(f'v_mfma_f32_16x16x32_bf16 v[{32+4*m}:{35+4*m}], v[{r+4*m}:{r+4*m+3}], v[{r+16}:{r+19}], v[{32+4*m}:{35+4*m}]')
                for _ in range(2 if m == 0 else 1):
                    if rc.l: a(rc.l.pop(0))
        if p in (6, 13): a.stamp()
    a('s_waitcnt vmcnt(0)')
    X = 64
    for mt in range(4): exch8(a, 32 + 4*mt, X + 4*mt, None, 20, 's[28:29]')
    Q = range(8)
    for q in Q: unpack2(a, 80+2*q, 81+2*q, 224+q); unpack2(a, 104+2*q, 105+2*q, 232+q)
    for q in Q: a(f'v_pk_add_f32 {pr(X+2*q)}, {pr(X+2*q)}, {pr(80+2*q)}')
    for q in Q: a(f'v_pk_fma_f32 {pr(X+2*q)}, {pr(X+2*q)}, v[240:241], {pr(104+2*q)}')
    for q in Q:
        a(f'v_cvt_pk_bf16_f32 v{96+q}, v{X+2*q}, v{X+2*q+1}')
        if q and q % 2 == 0: a('v_add_u32 v7, 14336, v7')
        a(f'global_store_dword v7, v{96+q}, s[4:5] offset:{896*(q&1)}')
    a('s_waitcnt vmcnt(0)') if asmlib.STAMPS else None
    a.stamp_dump(5, 8)
    a.label('K6_END')
    a('s_endpgm')
    kernel('gemm4_kernel', (224, 1, 1), (512, 1, 1), LDSZ, 244, 40, a)

def gen_all(G):
    gen_k4(G); gen_k5(G); gen_k6(G)
```

```python
import sys, struct
sys.path.insert(0, 'work')
import asmlib
from asmlib import Asm
from layout import *

LOG2E = 1.4426950408889634
def f32(x): return '0x%08x' % struct.unpack('<I', struct.pack('<f', x))[0]

KERNELS = []

def kernel(name, grid, block, lds, vgpr, sgpr, a, keepv=False):
    import asmlib
    if asmlib.STAMPS:
        sgpr = 100
        if not keepv: vgpr = max(vgpr, 252)
    KERNELS.append((name, grid, block, lds, vgpr, sgpr, a.text()))

def srd(a, s, lo, hi, off, size):
    if off:
        a(f's_add_u32 s{s}, s{lo}, {off}')
        a(f's_addc_u32 s{s+1}, s{hi}, 0')
    else:
        a(f's_mov_b32 s{s}, s{lo}')
        a(f's_mov_b32 s{s+1}, s{hi}')
    a(f's_mov_b32 s{s+2}, {size}')
    a(f's_mov_b32 s{s+3}, 0x00020000')

def rnd_bf16(a, d, s):
    a(f'v_cvt_pk_bf16_f32 v{d}, v{s}, v{s}')
    a(f'v_lshlrev_b32 v{d}, 16, v{d}')

def unpack2(a, lo, hi, s):
    a(f'v_lshlrev_b32 v{lo}, 16, v{s}')
    a(f'v_and_b32 v{hi}, 0xffff0000, v{s}')

def ln_scalars(a, mean, var, mb, rinv, t):
    rnd_bf16(a, mb, mean)
    rnd_bf16(a, t, var)
    a(f'v_add_f32 v{t}, {f32(1e-5)}, v{t}')
    rnd_bf16(a, t, t)
    a(f'v_sqrt_f32 v{t}, v{t}')
    rnd_bf16(a, t, t)
    a(f'v_rcp_f32 v{rinv}, v{t}')

def gen_k1():
    a = Asm()
    pr = lambda r: f'v[{r}:{r+1}]'
    a('s_cmp_lt_u32 s2, 64')
    a('s_cbranch_scc1 K1_LN')
    a('s_cmp_lt_u32 s2, 512')
    a('s_cbranch_scc1 K1_KGEN')
    a('s_endpgm')
    a.label('K1_LN')
    SC = 30208; RD = 32256; TR = 36864
    a.stamp(real=True); a.stamp()
    a('s_load_dwordx2 s[4:5], s[0:1], 0')
    a('s_load_dwordx2 s[8:9], s[0:1], 144')
    a('s_load_dwordx4 s[12:15], s[0:1], 112')
    a('v_lshrrev_b32 v1, 3, v0')
    a('v_and_b32 v2, 7, v0')
    a('s_mul_i32 s6, s2, 28672')
    a('v_mul_u32_u24 v3, 896, v1')
    a('v_lshl_add_u32 v3, v2, 4, v3')
    a('v_add_u32 v3, s6, v3')
    a('v_lshlrev_b32 v10, 1, v0')
    a('s_lshl_b32 s7, s2, 7')
    a('v_mul_u32_u24 v11, 5376, v1')
    a('v_lshl_add_u32 v11, v2, 4, v11')
    a('v_add_u32 v11, s7, v11')
    a('s_waitcnt lgkmcnt(0)')
    for i in range(7):
        a(f'global_load_dwordx4 v[{16+4*i}:{19+4*i}], v3, s[4:5] offset:{128*i}')
    srd(a, 16, 12, 13, 0, 896)
    a('buffer_load_ushort v12, v10, s[16:19], 0 offen')
    a('buffer_load_ushort v13, v10, s[16:19], 0 offen offset:512')
    WM = 64
    a('s_cmp_ge_u32 s2, 42')
    a('s_cbranch_scc1 K1_NOW')
    for i in range(14):
        if i: a(f'v_add_u32 v11, {32*5376}, v11')
        a(f'global_load_dwordx4 v[{WM+4*i}:{WM+4*i+3}], v11, s[14:15]')
    a('s_waitcnt vmcnt(14)')
    a('s_branch K1_NOW2')
    a.label('K1_NOW')
    a('s_waitcnt vmcnt(0)')
    a.label('K1_NOW2')
    a.stamp()
    a('v_mov_b32 v9, 0x3f803f80')
    a('v_dot2_f32_bf16 v44, v16, v9, 0')
    a('v_dot2_f32_bf16 v45, v16, v16, 0')
    for k in range(1, 28):
        a(f'v_dot2_f32_bf16 v44, v{16+k}, v9, v44')
        a(f'v_dot2_f32_bf16 v45, v{16+k}, v{16+k}, v45')
    for r in (12, 13):
        a(f'v_lshlrev_b32 v{r}, 16, v{r}')
        a(f'v_mul_f32 v14, {f32(-LOG2E)}, v{r}')
        a('v_exp_f32 v14, v14')
        a('v_add_f32 v14, 1.0, v14')
        a('v_rcp_f32 v14, v14')
        a(f'v_mul_f32 v{r}, v{r}, v14')
        rnd_bf16(a, r, r)
    a('v_lshlrev_b32 v10, 2, v0')
    a(f'ds_write_b32 v10, v12 offset:{SC}')
    a(f'ds_write_b32 v10, v13 offset:{SC+1024}')
    for dp in ('quad_perm:[1,0,3,2]', 'quad_perm:[2,3,0,1]', 'row_half_mirror'):
        for r in (44, 45): a(f'v_add_f32_dpp v{r}, v{r}, v{r} {dp} row_mask:0xf bank_mask:0xf')
    a(f'v_mul_f32 v44, {f32(1.0/448)}, v44')
    a(f'v_mul_f32 v45, {f32(1.0/448)}, v45')
    a('v_fma_f32 v45, -v44, v44, v45')
    a('v_max_f32 v45, 0, v45')
    ln_scalars(a, 44, 45, 46, 48, 47)
    a('v_mov_b32 v49, v48'); a('v_mov_b32 v47, v46')
    a('v_mul_u32_u24 v4, 928, v1')
    a('v_lshrrev_b32 v5, 3, v1')
    a('v_lshl_add_u32 v4, v5, 7, v4')
    a('v_lshl_add_u32 v4, v2, 4, v4')
    for i in range(7):
        for jj in range(4):
            k = 4*i + jj; t = 52 + 2*jj
            unpack2(a, t, t+1, 16 + k)
            a(f'v_pk_add_f32 {pr(t)}, {pr(t)}, v[46:47] neg_lo:[0,1] neg_hi:[0,1]')
        for jj in range(4):
            k = 4*i + jj; t = 52 + 2*jj
            a(f'v_cvt_pk_bf16_f32 v{16+k}, v{t}, v{t+1}')
        for jj in range(4):
            k = 4*i + jj; t = 52 + 2*jj
            unpack2(a, t, t+1, 16 + k)
            a(f'v_pk_mul_f32 {pr(t)}, {pr(t)}, v[48:49]')
        for jj in range(4):
            k = 4*i + jj; t = 52 + 2*jj
            a(f'v_cvt_pk_bf16_f32 v{16+k}, v{t}, v{t+1}')
        a(f'ds_write_b128 v4, v[{16+4*i}:{19+4*i}] offset:{128*i}')
    a('v_and_b32 v5, 15, v0')
    a('v_bfe_u32 v6, v0, 4, 2')
    a('v_lshrrev_b32 v7, 6, v0')
    a('v_lshrrev_b32 v8, 2, v5')
    a('v_lshl_add_u32 v8, v6, 3, v8')
    a('v_mul_u32_u24 v8, 928, v8')
    a('v_lshl_add_u32 v8, v6, 7, v8')
    a('v_lshl_add_u32 v8, v7, 5, v8')
    a('v_and_b32 v9, 3, v5')
    a('v_lshl_add_u32 v8, v9, 3, v8')
    a('v_mul_u32_u24 v12, 7168, v7')
    a(f'v_add_u32 v12, {TR}, v12')
    a('v_lshl_add_u32 v13, v5, 6, v12')
    a('v_lshl_add_u32 v13, v6, 4, v13')
    a('v_and_b32 v14, 63, v0')
    a('v_lshl_add_u32 v12, v14, 4, v12')
    a('v_lshlrev_b32 v9, 4, v14')
    a('v_lshl_add_u32 v9, v7, 10, v9')
    a('v_add_u32 v9, s6, v9')
    a(f's_add_u32 s10, s8, {XNT}'); a('s_addc_u32 s11, s9, 0')
    a('v_lshlrev_b32 v10, 2, v1')
    a('s_waitcnt lgkmcnt(0)')
    a.stamp()
    a('s_barrier')
    a.stamp()
    for i in range(7):
        a(f'ds_read_b64_tr_b16 v[{16+4*i}:{17+4*i}], v8 offset:{128*i}')
        a(f'ds_read_b64_tr_b16 v[{18+4*i}:{19+4*i}], v8 offset:{128*i+4*928}')
    for i in range(7):
        a(f's_waitcnt lgkmcnt({min(15, 12-2*i+i)})')
        a(f'ds_write_b128 v13, v[{16+4*i}:{19+4*i}] offset:{1024*i}')
    a('s_waitcnt lgkmcnt(0)')
    for i in range(7): a(f'ds_read_b128 v[{16+4*i}:{19+4*i}], v12 offset:{1024*i}')
    for i in range(7):
        a(f's_waitcnt lgkmcnt({6-i})')
        if i: a('v_add_u32 v9, 4096, v9')
        a(f'global_store_dwordx4 v9, v[{16+4*i}:{19+4*i}], s[10:11]')
    a.stamp()
    a('s_cmp_ge_u32 s2, 42')
    a('s_cbranch_scc1 K1_LNEND')
    for i in range(14): a(f'ds_read_b32 v{44+i}, v10 offset:{SC+128*i}')
    for j in range(8): a(f'v_mov_b32 v{120+j}, 0')
    a('s_waitcnt vmcnt(7) lgkmcnt(0)')
    for i in range(14):
        for jj in range(4):
            unpack2(a, 58, 59, WM + 4*i + jj)
            a(f'v_fmac_f32 v{120+2*jj}, v{44+i}, v58')
            a(f'v_fmac_f32 v{121+2*jj}, v{44+i}, v59')
    for j in range(8): a(f'v_add_f32_dpp v{120+j}, v{120+j}, v{120+j} row_ror:8 row_mask:0xf bank_mask:0xf')
    for sw in ('v_permlane32_swap_b32', 'v_permlane16_swap_b32'):
        for j in range(8): a(f'v_mov_b32 v{44+j}, v{120+j}')
        for j in range(8): a(f'{sw} v{120+j}, v{44+j}')
        for j in range(8): a(f'v_add_f32 v{120+j}, v{120+j}, v{44+j}')
    a('v_lshlrev_b32 v4, 5, v2')
    a('v_lshl_add_u32 v4, v7, 8, v4')
    a('v_cmp_gt_u32 vcc, 8, v14')
    a('s_and_saveexec_b64 s[20:21], vcc')
    a(f'ds_write_b128 v4, v[120:123] offset:{RD}')
    a(f'ds_write_b128 v4, v[124:127] offset:{RD+16}')
    a('s_mov_b64 exec, s[20:21]')
    a('s_waitcnt lgkmcnt(0)')
    a('s_barrier')
    a('v_cmp_gt_u32 vcc, 64, v0')
    a('s_and_saveexec_b64 s[20:21], vcc')
    a('s_cbranch_execz K1_LNEND')
    a('v_lshlrev_b32 v4, 2, v0')
    for u in range(4): a(f'ds_read_b32 v{16+u}, v4 offset:{RD+256*u}')
    a('s_lshl_b32 s7, s2, 8')
    a('v_add_u32 v4, s7, v4')
    a('s_waitcnt lgkmcnt(0)')
    a('v_add_f32 v16, v16, v17'); a('v_add_f32 v18, v18, v19'); a('v_add_f32 v16, v16, v18')
    rnd_bf16(a, 16, 16)
    a(f'global_store_dword v4, v16, s[8:9] offset:{MOD}')
    a('v_add_f32 v17, 1.0, v16')
    rnd_bf16(a, 17, 17)
    a('s_cmp_lt_u32 s2, 7'); a('s_cbranch_scc1 K1_LNEND')
    a('s_cmp_lt_u32 s2, 14'); a('s_cbranch_scc1 K1_MOD_A')
    a('s_cmp_lt_u32 s2, 28'); a('s_cbranch_scc1 K1_LNEND')
    a('s_cmp_ge_u32 s2, 35'); a('s_cbranch_scc1 K1_LNEND')
    a(f'global_store_dword v4, v17, s[8:9] offset:{MOD+2*1792}')
    a('s_branch K1_LNEND')
    a.label('K1_MOD_A')
    a('v_add_u32 v4, 6*1792, v4')
    a(f'global_store_dword v4, v17, s[8:9] offset:{MOD}')
    a.label('K1_LNEND')
    if asmlib.STAMPS:
        a('s_waitcnt vmcnt(0)'); a.stamp(); a.stamp()
        a.stamp_dump(0, 8)
    a('s_endpgm')
    a.label('K1_KGEN')
    a.stamp(real=True); a.stamp()
    a('s_load_dwordx8 s[4:11], s[0:1], 8')
    a('s_load_dwordx4 s[12:15], s[0:1], 40')
    a('s_load_dwordx2 s[16:17], s[0:1], 56')
    a('s_load_dwordx2 s[18:19], s[0:1], 144')
    a('s_sub_u32 s3, s2, 64')
    a('s_lshl_b32 s20, s3, 9')
    a('v_lshl_add_u32 v1, v0, 1, s20')
    a('s_lshl_b32 s21, s3, 1')
    a('v_mov_b32 v2, s21')
    a('s_waitcnt lgkmcnt(0)')
    a.stamp()
    for i in range(6):
        a(f'global_load_ushort v{4+i}, v1, s[{4+2*i}:{5+2*i}]')
    a('global_load_ushort v10, v2, s[16:17]')
    a('v_lshlrev_b32 v112, 2, v0')
    for r in range(1, 16): a(f'v_xor_b32 v{112+r}, {r<<4}, v112')
    a('s_waitcnt vmcnt(0)')
    a.stamp()
    for i in range(7): a(f'v_lshlrev_b32 v{4+i}, 16, v{4+i}')
    a(f'v_mul_f32 v10, {f32(LOG2E)}, v10')
    a('v_exp_f32 v10, v10')
    rnd_bf16(a, 10, 10)
    a('v_mul_f32 v4, v10, v4')
    a('v_mul_f32 v5, v10, v5')
    a('v_mul_f32 v6, v10, v6')
    a('v_mul_f32 v7, v10, v7')
    a('v_mul_f32 v11, v9, v7')
    a('v_fma_f32 v12, v8, v6, -v11')
    a('v_mul_f32 v11, v9, v6')
    a('v_fma_f32 v13, v8, v7, v11')
    a('v_max_f32 v11, |v12|, |v13|')
    for sh in (1, 2, 4, 8):
        a(f'v_max_f32_dpp v11, v11, v11 row_shr:{sh} row_mask:0xf bank_mask:0xf')
    a('v_max_f32_dpp v11, v11, v11 row_bcast:15 row_mask:0xa bank_mask:0xf')
    a('v_max_f32_dpp v11, v11, v11 row_bcast:31 row_mask:0xc bank_mask:0xf')
    a('v_readlane_b32 s22, v11, 63')
    a('v_lshrrev_b32 v14, 6, v0')
    a('v_lshlrev_b32 v14, 2, v14')
    a('v_mov_b32 v15, s22')
    LK = 0; YB = 4608; XB = 20992
    a(f'ds_write_b32 v14, v15 offset:{LK+4352}')
    a(f'v_mul_f32 v4, {f32(LOG2E)}, v4')
    a(f'v_mul_f32 v5, {f32(1/(2*3.141592653589793))}, v5')
    def cexp(dr, di, mult):
        a(f'v_mul_f32 v16, {f32(mult)}, v4')
        a(f'v_mul_f32 v17, {f32(mult)}, v5')
        a('v_exp_f32 v16, v16')
        a('v_fract_f32 v17, v17')
        a(f'v_cos_f32 v{dr}, v17')
        a(f'v_sin_f32 v{di}, v17')
        a(f'v_mul_f32 v{dr}, v{dr}, v16')
        a(f'v_mul_f32 v{di}, v{di}, v16')
    def cmul(d, x, y):
        a(f'v_mul_f32 v16, v{x+1}, v{y+1}')
        a(f'v_mul_f32 v17, v{x+1}, v{y}')
        a(f'v_fma_f32 v{d}, v{x}, v{y}, -v16')
        a(f'v_fma_f32 v{d+1}, v{x}, v{y+1}, v17')
    E = lambda e: 20 + 2*(e-1)
    Y = lambda j: 34 + 2*(j-1)
    M = lambda m: 64 + 2*(m-1)
    T = lambda e: 96 + 2*e
    cexp(E(1), E(1)+1, 1.0); cexp(Y(1), Y(1)+1, 8.0); cexp(M(1), M(1)+1, 128.0)
    a('s_waitcnt lgkmcnt(0)')
    a('s_barrier')
    a.stamp()
    a('v_mov_b32 v14, 0')
    a(f'ds_read_b128 v[16:19], v14 offset:{LK+4352}')
    a('s_waitcnt lgkmcnt(0)')
    a('v_max3_f32 v16, v16, v17, v18')
    a('v_max_f32 v16, v16, v19')
    a('v_frexp_exp_i32_f32 v16, v16')
    a('v_mov_b32 v17, 100')
    a('v_med3_i32 v16, v16, -100, v17') if False else None
    a('v_max_i32 v16, -16, v16') if False else None
    a('v_min_i32 v16, v16, v17')
    a('v_sub_u32 v17, 0, v17')
    a('v_max_i32 v16, v16, v17')
    a('v_sub_u32 v17, 15, v16')
    a(f'v_ldexp_f32 v{T(0)}, v12, v17')
    a(f'v_ldexp_f32 v{T(0)+1}, v13, v17')
    a('v_add_u32 v17, -7, v16')
    a('v_ldexp_f32 v15, 1.0, v17')
    def chain(R, n):
        for j in range(2, n + 1):
            p = 1 << (j.bit_length() - 1)
            if p == j: cmul(R(j), R(j//2), R(j//2))
            else: cmul(R(j), R(p), R(j-p))
    def wr(row, re, im, neg=False, base=XB):
        a(f'v_cvt_pk_f16_f32 v18, v{re}, {"-" if neg else ""}v{im}')
        a(f'ds_write_b32 v{112+(row&15)}, v18 offset:{base+row*1024}')
    chain(Y, 15)
    a('v_mov_b32 v18, 0x3c00')
    a(f'ds_write_b32 v112, v18 offset:{YB}')
    for j in range(1, 16): wr(j, Y(j), Y(j)+1, neg=True, base=YB)
    chain(E, 7); chain(M, 16)
    for e in range(1, 8): cmul(T(e), T(0), E(e))
    TMP = 14
    def xrow(row, t, m):
        if m == 0: wr(row, T(t), T(t)+1)
        else:
            cmul(2, T(t), M(m)); wr(row, 2, 3)
    for i in range(2):
        for e in range(8): xrow(8*i + e, e, i)
    for i in range(2):
        for e in range(4): xrow(16 + 4*i + e, 2*e, 2 + i)
    for i in range(4):
        for e in range(2): xrow(24 + 2*i + e, 4*e, 4 + i)
    for i in range(8): xrow(32 + i, 0, 8 + i)
    xrow(40, 0, 16)
    a('v_cmp_eq_u32 vcc, 0, v0')
    a('s_and_saveexec_b64 s[24:25], vcc')
    a('s_lshl_b32 s26, s3, 2')
    a('v_mov_b32 v14, s26')
    a(f's_add_u32 s28, s18, {KSC}')
    a('s_addc_u32 s29, s19, 0')
    a('global_store_dword v14, v15, s[28:29]')
    a('s_mov_b64 exec, s[24:25]')
    a('v_lshrrev_b32 v1, 6, v0')
    a('v_and_b32 v2, 15, v0')
    a('v_bfe_u32 v3, v0, 4, 2')
    a('v_readfirstlane_b32 s23, v1')
    a('v_xor_b32 v4, v3, v2')
    a('s_waitcnt lgkmcnt(0)')
    a.stamp()
    a('s_barrier')
    a.stamp()
    a('s_cmp_eq_u32 s23, 3')
    a('s_cbranch_scc1 K1_KG_SKIP')
    a('v_lshlrev_b32 v5, 10, v2')
    for u in range(4):
        a(f'v_xor_b32 v{6+u}, {4*u}, v4')
        a(f'v_lshl_add_u32 v{6+u}, v{6+u}, 4, v5')
    a('s_lshl_b32 s24, s23, 14')
    a(f's_add_u32 s24, s24, {XB}')
    for u in range(4): a(f'v_add_u32 v{10+u}, s24, v{6+u}')
    for r in range(4): a(f'v_mov_b32 v{16+r}, 0')
    for s in range(16):
        a(f'ds_read_b128 v[{32+8*s}:{35+8*s}], v{10+(s&3)} offset:{256*(s>>2)}') if s < 8 else None
        a(f'ds_read_b128 v[{36+8*s}:{39+8*s}], v{6+(s&3)} offset:{YB+256*(s>>2)}') if s < 8 else None
    for s in range(16):
        b = 32 + 8*(s & 7)
        a(f's_waitcnt lgkmcnt({14 if s < 8 else 2*(15-s)})')
        a(f'v_mfma_f32_16x16x32_f16 v[16:19], v[{b}:{b+3}], v[{b+4}:{b+7}], v[16:19]')
        if s < 8:
            s2 = s + 8
            a(f'ds_read_b128 v[{b}:{b+3}], v{10+(s2&3)} offset:{256*(s2>>2)}')
            a(f'ds_read_b128 v[{b+4}:{b+7}], v{6+(s2&3)} offset:{YB+256*(s2>>2)}')
    a('v_lshlrev_b32 v20, 3, v2')
    a('s_cmp_eq_u32 s23, 0')
    a('s_cbranch_scc1 K1_KG_T0')
    a('s_cmp_eq_u32 s23, 1')
    a('s_cbranch_scc1 K1_KG_T1')
    a('v_lshl_add_u32 v21, v3, 9, v20')
    for r in range(4): a(f'v_add_u32 v{24+r}, {1024+128*r}, v21')
    a('s_branch K1_KG_W')
    a.label('K1_KG_T0')
    a('v_and_b32 v21, 1, v3')
    a('v_lshl_add_u32 v21, v21, 2, v20')
    a('v_lshrrev_b32 v22, 1, v3')
    a('v_lshl_add_u32 v21, v22, 7, v21')
    for r in range(4): a(f'v_add_u32 v{24+r}, {r}, v21')
    a('s_branch K1_KG_W')
    a.label('K1_KG_T1')
    a('v_lshl_add_u32 v21, v3, 7, v20')
    a('v_lshl_add_u32 v22, v3, 8, v20')
    a('v_cmp_gt_u32 vcc, 2, v3')
    for r in range(4):
        a(f'v_add_u32 v28, {256+2*r}, v21')
        a(f'v_add_u32 v29, {4*(r&1)+128*(r>>1)}, v22')
        a(f'v_cndmask_b32 v{24+r}, v29, v28, vcc')
    a.label('K1_KG_W')
    a('v_mov_b32 v28, 2056')
    for r in range(4):
        a(f'v_min_u32 v{24+r}, v{24+r}, v28')
        a(f'v_lshlrev_b32 v{24+r}, 1, v{24+r}')
        a(f'v_mul_f32 v{16+r}, {f32(2.0**-8)}, v{16+r}')
        a(f'v_cvt_f16_f32 v{16+r}, v{16+r}')
        a(f'ds_write_b16 v{24+r}, v{16+r} offset:{LK}')
    a.label('K1_KG_SKIP')
    a('v_lshlrev_b32 v1, 3, v0')
    for p in range(4):
        a(f'v_add_u32 v2, {2*p}, v1')
        a(f'v_add_u32 v3, {2*p+1}, v1')
        a('v_cvt_f32_u32 v2, v2')
        a('v_cvt_f32_u32 v3, v3')
        a('v_cvt_pk_bf16_f32 v4, v2, v3')
        unpack2(a, 2, 3, 4)
        a('v_cvt_u32_f32 v2, v2')
        a('v_cvt_u32_f32 v3, v3')
        a(f'v_lshlrev_b32 v{32+2*p}, 1, v2')
        a(f'v_lshlrev_b32 v{33+2*p}, 1, v3')
    a('s_lshl_b32 s24, s3, 12')
    a('v_lshl_add_u32 v5, v0, 4, s24')
    a(f's_add_u32 s30, s18, {KP}')
    a('s_addc_u32 s31, s19, 0')
    a('s_waitcnt lgkmcnt(0)')
    a.stamp()
    a('s_barrier')
    for p in range(4):
        a(f'ds_read_u16 v{40+p}, v{32+2*p} offset:{LK}')
        a(f'ds_read_u16 v{44+p}, v{33+2*p} offset:{LK}')
    a('s_waitcnt lgkmcnt(0)')
    for p in range(4): a(f'v_lshl_or_b32 v{40+p}, v{44+p}, 16, v{40+p}')
    a('global_store_dwordx4 v5, v[40:43], s[30:31]')
    a('s_waitcnt vmcnt(0)') if asmlib.STAMPS else None
    a.stamp_dump(0, 18)
    a.label('K1_END')
    a('s_endpgm')
    kernel('prep_kernel', (512, 1, 1), (256, 1, 1), 70144, 128, 32, a)

HEADER = open('adaLN_cond__ssm_conv_s4__mixer_s_mlp__prompt.s.ref').read().split('; Override launch')[0]

def emit(path):
    out = [HEADER.rstrip('\n')]
    for (name, grid, block, lds, vgpr, sgpr, text) in KERNELS:
        out.append(f'; @launch kernel={name} grid=({grid[0]},{grid[1]},{grid[2]}) block=({block[0]},{block[1]},{block[2]}) lds={lds}')
    out.append('.amdgcn_target "amdgcn-amd-amdhsa--gfx950"')
    out.append('.text')
    for (name, grid, block, lds, vgpr, sgpr, text) in KERNELS:
        out += [f'.globl {name}', '.p2align 8', f'.type {name},@function', f'{name}:', text]
    out.append('.section .rodata,"a"')
    for (name, grid, block, lds, vgpr, sgpr, text) in KERNELS:
        acc = (vgpr + 3) // 4 * 4
        out += ['.p2align 6', f'.amdhsa_kernel {name}', f'  .amdhsa_next_free_vgpr {vgpr}', f'  .amdhsa_next_free_sgpr {sgpr}',
                f'  .amdhsa_accum_offset {acc}', '  .amdhsa_group_segment_fixed_size 0', '  .amdhsa_kernarg_size 152',
                '  .amdhsa_user_sgpr_count 2', '  .amdhsa_user_sgpr_kernarg_segment_ptr 1', '  .amdhsa_system_sgpr_workgroup_id_x 1',
                '.end_amdhsa_kernel']
    open(path, 'w').write('\n'.join(out) + '\n')

if __name__ == '__main__':
    gen_k1()
    try:
        import gen2
        gen2.gen_all(sys.modules[__name__])
    except ImportError:
        pass
    emit('adaLN_cond__ssm_conv_s4__mixer_s_mlp__prompt.s')
```

```python
import asmlib, os
from asmlib import Asm
from layout import *

def gen_k2(G):
    f32, srd, rnd_bf16, unpack2, kernel = G.f32, G.srd, G.rnd_bf16, G.unpack2, G.kernel
    a = Asm()
    a('s_cmp_lt_u32 s2, 224')
    a('s_cbranch_scc1 K2_CONV')
    a('s_cmp_lt_u32 s2, 294')
    a('s_cbranch_scc1 K2_PACK')
    a('s_endpgm')
    a.label('K2_CONV')
    pr = lambda r: f'v[{r}:{r+1}]'
    TCS = 34816; KB = 69632; RED = 17408
    osig = [0, 4, 8, 12, 2, 6, 10, 14]
    tbase = lambda sg: sg * 4352 + osig[sg] * 16
    a.stamp(real=True); a.stamp()
    a('s_load_dwordx2 s[4:5], s[0:1], 144')
    a('s_load_dwordx2 s[6:7], s[0:1], 64')
    a('s_lshl_b32 s3, s2, 3')
    a('s_lshl_b32 s16, s2, 2')
    a('v_lshrrev_b32 v1, 2, v0')
    a('v_mul_u32_u24 v1, 28672, v1')
    a('v_and_b32 v2, 3, v0')
    a('v_lshl_add_u32 v1, v2, 4, v1')
    a('s_lshl_b32 s17, s2, 7')
    a('v_add_u32 v1, s17, v1')
    a('s_lshl_b32 s17, s2, 13')
    a('v_lshl_add_u32 v2, v0, 4, s17')
    a('v_add_u32 v7, 4096, v2')
    a('s_waitcnt lgkmcnt(0)')
    a.stamp()
    a(f's_add_u32 s22, s3, {MOD}');        a('s_load_dwordx2 s[8:9], s[4:5], s22')
    a(f's_add_u32 s22, s3, {MOD+7*1792}'); a('s_load_dwordx2 s[10:11], s[4:5], s22')
    a(f's_add_u32 s22, s3, {MOD+3584}');   a('s_load_dwordx2 s[12:13], s[4:5], s22')
    a(f's_add_u32 s22, s3, {KSC}');        a('s_load_dwordx2 s[14:15], s[4:5], s22')
    a('s_load_dword s16, s[6:7], s16')
    a(f's_add_u32 s18, s4, {XNT}'); a('s_addc_u32 s19, s5, 0')
    a(f's_add_u32 s20, s4, {KP}'); a('s_addc_u32 s21, s5, 0')
    a('global_load_dwordx4 v[8:11], v1, s[18:19]')
    a('global_load_dwordx4 v[12:15], v1, s[18:19] offset:64')
    a('global_load_dwordx4 v[16:19], v2, s[20:21]')
    a('global_load_dwordx4 v[20:23], v7, s[20:21]')
    for r in range(4): a(f'v_mov_b32 v{24+r}, 0')
    a('v_and_b32 v3, 31, v0')
    a('v_lshlrev_b32 v3, 4, v3')
    a('v_lshrrev_b32 v4, 5, v0')
    a('v_mul_u32_u24 v4, 4608, v4')
    a('v_add_u32 v3, v3, v4')
    a(f'v_add_u32 v3, {KB}, v3')
    a('v_and_b32 v4, 7, v0')
    a('v_mul_u32_u24 v5, 4352, v4')
    a('v_and_b32 v6, 3, v4')
    a('v_lshl_add_u32 v5, v6, 6, v5')
    a('v_lshrrev_b32 v6, 2, v4')
    a('v_lshl_add_u32 v5, v6, 5, v5')
    a('v_bfe_u32 v6, v0, 3, 1')
    a(f'v_mul_u32_u24 v6, {TCS}, v6')
    a('v_add_u32 v5, v5, v6')
    a('v_cmp_gt_u32 vcc, 64, v0')
    a('s_and_saveexec_b64 s[24:25], vcc')
    a('ds_write_b128 v3, v[24:27]')
    a('v_cmp_gt_u32 vcc, 16, v0')
    a('s_and_b64 exec, exec, vcc')
    a('ds_write_b128 v5, v[24:27] offset:4096')
    a('ds_write_b128 v5, v[24:27] offset:4112')
    a('s_mov_b64 exec, s[24:25]')
    a('v_lshlrev_b32 v3, 4, v0')
    a('v_sub_u32 v4, 4080, v3')
    a(f'v_add_u32 v5, {KB+512}, v3')
    a('v_and_b32 v100, 15, v0')
    a('v_bfe_u32 v101, v0, 4, 2')
    a('v_lshrrev_b32 v102, 6, v0')
    a('v_readfirstlane_b32 s26, v102')
    a('s_lshr_b32 s27, s26, 1')
    a('s_and_b32 s28, s26, 1')
    a('v_and_b32 v103, 7, v100')
    a('v_sub_u32 v103, 7, v103')
    a('v_mul_u32_u24 v104, 4352, v103')
    a('v_and_b32 v105, 3, v103')
    a('v_lshl_add_u32 v104, v105, 6, v104')
    a('v_lshrrev_b32 v105, 2, v103')
    a('v_lshl_add_u32 v104, v105, 5, v104')
    a('v_and_b32 v105, 1, v101')
    a('v_lshrrev_b32 v106, 1, v101')
    a('v_lshlrev_b32 v106, 1, v106')
    a('v_sub_u32 v105, v105, v106')
    a('v_lshrrev_b32 v106, 3, v100')
    a('v_sub_u32 v106, v105, v106')
    a('v_add_u32 v106, 19, v106')
    a('v_lshl_add_u32 v104, v106, 4, v104')
    a(f's_mul_i32 s29, s27, {TCS}')
    a('s_lshl_b32 s30, s28, 8')
    a('s_sub_u32 s29, s29, s30')
    a('v_add_u32 v176, s29, v104')
    a('v_lshlrev_b32 v106, 5, v100')
    a('v_lshl_add_u32 v105, v105, 4, v106')
    a('s_mul_i32 s29, s27, 4608')
    a(f's_add_u32 s29, s29, {KB+512-192}')
    a('s_sub_u32 s29, s29, s30')
    a('v_add_u32 v177, s29, v105')
    a('v_lshlrev_b32 v106, 6, v100')
    a('v_lshl_add_u32 v106, v101, 4, v106')
    a(f's_mul_i32 s29, s27, {TCS}')
    a('s_lshl_b32 s30, s28, 13')
    a('s_add_u32 s29, s29, s30'); a(f's_add_u32 s29, s29, {RED}')
    a('v_add_u32 v178, s29, v106')
    WT = KB + 9216
    a('v_lshlrev_b32 v107, 2, v102')
    a(f'v_add_u32 v107, {WT}, v107')
    a.stamp()
    XN = 188; SL = 196
    for c in range(2):
        a(f's_waitcnt vmcnt({3-c})')
        src = 8 + 4*c
        for k in range(4): unpack2(a, 44+2*k, 45+2*k, src + k)
        for k in range(4): a(f'v_cvt_pk_f16_f32 v{52+k}, v{51-2*k}, v{50-2*k}')
        for k in range(4): a(f'v_mov_b32 v{XN+4*c+k}, v{src+k}')
        a(f'ds_write_b128 v4, v[52:55] offset:{TCS*c}')
    a('s_waitcnt vmcnt(0)')
    a('ds_write_b128 v5, v[16:19]')
    a('ds_write_b128 v5, v[20:23] offset:4608')
    for c in range(2):
        for k in range(4):
            a(f'v_cvt_f32_f16 v{SL+8*c+2*k}, v{16+4*c+k}')
            a(f'v_cvt_f32_f16_sdwa v{SL+8*c+2*k+1}, v{16+4*c+k} src0_sel:WORD_1')
    for j in range(1, 8):
        for c in range(2): a(f'v_add_f32 v{SL+8*c+j}, v{SL+8*c+j}, v{SL+8*c+j-1}')
    for c in range(2): a(f'v_mov_b32 v{44+c}, v{SL+8*c+7}')
    for sh in (1, 2, 4, 8):
        for c in range(2): a(f'v_add_f32_dpp v{44+c}, v{44+c}, v{44+c} row_shr:{sh} row_mask:0xf bank_mask:0xf bound_ctrl:0')
    for c in range(2): a(f'v_add_f32_dpp v{44+c}, v{44+c}, v{44+c} row_bcast:15 row_mask:0xa bank_mask:0xf')
    for c in range(2): a(f'v_add_f32_dpp v{44+c}, v{44+c}, v{44+c} row_bcast:31 row_mask:0xc bank_mask:0xf')
    for c in range(2): a(f'v_sub_f32 v{212+c}, v{44+c}, v{SL+8*c+7}')
    a('v_and_b32 v46, 63, v0')
    a('v_cmp_eq_u32 vcc, 63, v46')
    a('s_and_saveexec_b64 s[24:25], vcc')
    a('ds_write_b32 v107, v44')
    a('ds_write_b32 v107, v45 offset:16')
    a('s_mov_b64 exec, s[24:25]')
    a('s_waitcnt lgkmcnt(0)')
    a.stamp()
    a('s_barrier')
    for c in range(2):
        a(f'ds_read_b128 v[{44+8*c}:{47+8*c}], v3 offset:{TCS*c}')
        a(f'ds_read_b128 v[{48+8*c}:{51+8*c}], v3 offset:{TCS*c+16}')
    a(f'v_mov_b32 v107, {WT}')
    a('ds_read_b128 v[216:219], v107')
    a('ds_read_b128 v[220:223], v107 offset:16')
    for c in range(2):
        D = 44 + 8*c
        a('s_waitcnt lgkmcnt(4)' if c == 0 else 's_waitcnt lgkmcnt(7)')
        P, O, O2 = 60 + 18*c, 66 + 18*c, 72 + 18*c
        for i in range(6): a(f'v_mov_b32 v{P+i}, v{D+1+i}')
        for i in range(6): a(f'v_alignbit_b32 v{O+i}, v{D+i+1}, v{D+i}, 16')
        for i in range(6): a(f'v_alignbit_b32 v{O2+i}, v{D+i+2}, v{D+i+1}, 16')
        src = {1: O, 2: P, 3: O2, 4: D+2, 5: O+2, 6: P+2, 7: O2+2}
        for sg in range(1, 8):
            a(f'ds_write_b128 v3, v[{src[sg]}:{src[sg]+3}] offset:{TCS*c + tbase(sg)}')
    for wv in range(3):
        a(f's_cmp_gt_u32 s26, {wv}')
        a('s_cselect_b32 s29, 1.0, 0')
        for c in range(2): a(f'v_fma_f32 v{212+c}, v{216+4*c+wv}, s29, v{212+c}')
    a('v_lshlrev_b32 v184, 5, v0')
    a('s_lshl_b32 s29, s2, 13')
    a('v_lshl_add_u32 v186, v0, 4, s29')
    a('v_add_u32 v187, 4096, v186')
    from gen4 import Cap
    fc = Cap()
    for c in range(2):
        b = 224 + 8*c
        fc(f'v_mov_b32 v{b}, s{10+c}')
        fc(f'v_mov_b32 v{b+2}, s{8+c}')
        fc(f'v_mov_b32 v46, s{14+c}')
        fc(f'v_mul_f32 v46, s{12+c}, v46')
        fc(f'v_mul_f32 v{b+4}, v46, v{b}'); fc(f'v_mov_b32 v{b+5}, v{b+4}')
        fc(f'v_mul_f32 v{b+6}, v46, v{b+2}')
        fc('v_mov_b32 v46, s16')
        fc('v_lshlrev_b32 v46, 16, v46' if c == 0 else 'v_and_b32 v46, 0xffff0000, v46')
        fc(f'v_mul_f32 v{b+7}, s{12+c}, v46')
        E = 240 + 8*c
        for k in range(4): unpack2(fc, E+2*k, E+2*k+1, XN + 4*c + k)
        for j in range(8): fc(f'v_fma_f32 v{E+j}, v{E+j}, v{b}, v{b+2}')
        for k in range(4): fc(f'v_cvt_pk_bf16_f32 v{40+k}, v{E+2*k}, v{E+2*k+1}')
        for k in range(4): unpack2(fc, E+2*k, E+2*k+1, 40 + k)
        fc(f'v_mul_f32 v46, v{b+6}, v{212+c}')
        for j in range(8): fc(f'v_fma_f32 v{E+j}, v{E+j}, v{b+7}, v46')
        for j in range(8): fc(f'v_fma_f32 v{E+j}, v{SL+8*c+j}, v{b+6}, v{E+j}')
    ACC = 8
    a('s_waitcnt lgkmcnt(0)')
    a.stamp()
    a('s_barrier')
    a.stamp()
    SETS = (48, 112)
    def reads(ci, base):
        for p in range(8):
            a(f'ds_read_b128 v[{base+4*p}:{base+4*p+3}], v176 offset:{512*(7-p)+32*(6-2*ci)}')
            a(f'ds_read_b128 v[{base+32+4*p}:{base+35+4*p}], v177 offset:{512*p+32*(6-2*ci)}')
    order = sorted([(p, q) for p in range(8) for q in range(8) if p + q <= 7], key=lambda t: (max(t), t))
    order2 = [(p, q) for p in range(8) for q in range(8) if p + q <= 7]
    def spread(lst):
        out = []; rem = list(lst)
        while rem:
            pick = next((t for t in rem if all(sum(t) != sum(o) for o in out[-2:])), rem[0])
            out.append(pick); rem.remove(pick)
        return out
    o0 = []
    for mxv in range(8): o0 += spread([t for t in order if max(t) == mxv])
    order = o0
    order2 = spread(order2)
    reads(0, SETS[0])
    for r in range(32): a(f'v_mov_b32 v{ACC+r}, 0')
    for ci in range(4):
        base = SETS[ci & 1]
        lastmx = -1
        nxt = 0
        for idx, (p, q) in enumerate(order if ci == 0 else order2):
            mx = max(p, q)
            if ci == 0 and mx != lastmx:
                a(f's_waitcnt lgkmcnt({14 - 2*mx})'); lastmx = mx
            elif ci > 0 and idx == 0:
                a('s_waitcnt lgkmcnt(0)')
            t = ACC + 4*(p + q)
            a(f'v_mfma_f32_16x16x32_f16 v[{t}:{t+3}], v[{base+4*p}:{base+4*p+3}], v[{base+32+4*q}:{base+35+4*q}], v[{t}:{t+3}]')
            if ci >= 1:
                for _ in range(2):
                    if fc.l: a(fc.l.pop(0))
            if ci < 3 and (ci > 0 or mx == 7) and nxt < 8:
                nb = SETS[(ci + 1) & 1]; pp = nxt; nxt += 1
                a(f'ds_read_b128 v[{nb+4*pp}:{nb+4*pp+3}], v176 offset:{512*(7-pp)+32*(6-2*(ci+1))}')
                a(f'ds_read_b128 v[{nb+32+4*pp}:{nb+35+4*pp}], v177 offset:{512*pp+32*(6-2*(ci+1))}')
        while ci < 3 and nxt < 8:
            nb = SETS[(ci + 1) & 1]; pp = nxt; nxt += 1
            a(f'ds_read_b128 v[{nb+4*pp}:{nb+4*pp+3}], v176 offset:{512*(7-pp)+32*(6-2*(ci+1))}')
            a(f'ds_read_b128 v[{nb+32+4*pp}:{nb+35+4*pp}], v177 offset:{512*pp+32*(6-2*(ci+1))}')
        if ci < 3 and os.environ.get('CLS'): a.stamp()
    a.stamp()
    a('s_barrier')
    for t in range(8): a(f'ds_write_b128 v178, v[{ACC+4*t}:{ACC+4*t+3}] offset:{1024*t}')
    a(f's_add_u32 s20, s4, {GT}'); a('s_addc_u32 s21, s5, 0')
    a('s_waitcnt lgkmcnt(0)')
    a('s_barrier')
    a.stamp()
    for c in range(2):
        for hh in range(2):
            for k in range(2):
                r = 112 + 16*c + 8*hh + 4*k
                a(f'ds_read_b128 v[{r}:{r+3}], v184 offset:{TCS*c + RED + 8192*hh + 16*k}')
    for c in range(2):
        b = 224 + 8*c; r = 112 + 16*c; E = 240 + 8*c
        a(f's_waitcnt lgkmcnt({4-4*c})')
        for k in range(4): a(f'v_pk_add_f32 {pr(r+2*k)}, {pr(r+2*k)}, {pr(r+8+2*k)}')
        for k in range(4): a(f'v_pk_fma_f32 {pr(r+2*k)}, {pr(r+2*k)}, {pr(b+4)}, {pr(E+2*k)}')
        for k in range(4): a(f'v_cvt_pk_bf16_f32 v{40+4*c+k}, v{r+2*k}, v{r+2*k+1}')
        a(f'global_store_dwordx4 v{186+c}, v[{40+4*c}:{43+4*c}], s[20:21]')
    a('s_waitcnt vmcnt(0)') if asmlib.STAMPS else None
    a.stamp_dump(1, 4, vt=(100, 101))
    a('s_endpgm')
    a.label('K2_PACK')
    a.stamp(real=True); a.stamp()
    a('s_load_dwordx8 s[12:19], s[0:1], 80')
    a('s_load_dwordx2 s[20:21], s[0:1], 144')
    a('s_sub_u32 s3, s2, 224')
    a('s_waitcnt lgkmcnt(0)')
    a('s_mov_b32 s6, 896'); a('s_mov_b32 s10, 14336'); a('s_mov_b32 s11, -1')
    a('s_cmp_lt_u32 s3, 14')
    a('s_cbranch_scc0 K2_P34')
    a('s_cmp_lt_u32 s3, 7')
    a('s_cselect_b32 s4, s12, s14'); a('s_cselect_b32 s5, s13, s15')
    a(f's_mov_b32 s22, {W2P}')
    a(f's_cselect_b32 s22, {W1P}, s22')
    a(f's_cselect_b32 s11, {CS1}, -1')
    a('s_cselect_b32 s23, 0, 7')
    a('s_sub_u32 s23, s3, s23')
    a('s_mov_b32 s24, 0')
    a('s_branch K2_PGO')
    a.label('K2_P34')
    a('s_cmp_lt_u32 s3, 42')
    a('s_cbranch_scc0 K2_P4')
    a('s_mov_b32 s4, s16'); a('s_mov_b32 s5, s17'); a('s_mov_b32 s6, 3584')
    a(f's_mov_b32 s22, {W3P}'); a(f's_mov_b32 s11, {CS3}')
    a('s_sub_u32 s23, s3, 14'); a('s_mov_b32 s24, 0')
    a('s_branch K2_PGO')
    a.label('K2_P4')
    a('s_mov_b32 s4, s18'); a('s_mov_b32 s5, s19')
    a(f's_mov_b32 s22, {W4P}'); a('s_mov_b32 s10, 57344')
    a('s_sub_u32 s23, s3, 42')
    a('s_mul_i32 s24, s23, 37'); a('s_lshr_b32 s24, s24, 8')
    a('s_mul_i32 s25, s24, 7'); a('s_sub_u32 s23, s23, s25')
    a.label('K2_PGO')
    a(f's_mul_i32 s25, s24, {448*896}')
    a('s_lshl_b32 s26, s23, 7')
    a('s_add_u32 s25, s25, s26')
    a('s_add_u32 s4, s4, s25'); a('s_addc_u32 s5, s5, 0')
    a('s_lshl_b32 s25, s23, 2'); a('s_mul_i32 s25, s25, s10')
    a('s_mul_i32 s26, s24, 14336'); a('s_add_u32 s25, s25, s26'); a('s_add_u32 s25, s25, s22')
    a('s_add_u32 s8, s20, s25'); a('s_addc_u32 s9, s21, 0')
    a('v_lshrrev_b32 v1, 3, v0')
    a('v_and_b32 v2, 7, v0')
    a('v_mul_lo_u32 v3, v1, s6')
    a('v_lshl_add_u32 v3, v2, 4, v3')
    a('s_lshl_b32 s25, s6, 5')
    for i in range(14):
        if i: a('v_add_u32 v3, s25, v3')
        a(f'global_load_dwordx4 v[{16+4*i}:{19+4*i}], v3, s[4:5]')
    a('v_bfe_u32 v4, v1, 1, 1')
    a('v_bfe_u32 v5, v1, 3, 1')
    a('v_lshlrev_b32 v4, 2, v4')
    a('v_lshl_or_b32 v4, v5, 1, v4')
    a('v_xor_b32 v4, v4, v2')
    a('v_lshlrev_b32 v4, 4, v4')
    a('v_lshl_add_u32 v4, v1, 7, v4')
    a('v_mov_b32 v76, 0x05040100')
    a('v_mov_b32 v77, 0x07060302')
    a('v_cmp_eq_u32 vcc, 1, v5')
    a('v_cndmask_b32 v78, v76, v77, vcc')
    a('v_cndmask_b32 v79, v77, v76, vcc')
    a('v_and_b32 v5, 15, v0'); a('v_bfe_u32 v6, v0, 4, 2'); a('v_lshrrev_b32 v7, 6, v0')
    a('v_lshrrev_b32 v8, 2, v5')
    a('v_lshl_add_u32 v8, v6, 3, v8')
    a('v_and_b32 v9, 3, v5')
    a('v_lshrrev_b32 v10, 1, v7')
    a('v_lshl_add_u32 v10, v10, 2, v9')
    a('v_and_b32 v11, 1, v7')
    a('v_and_b32 v12, 1, v9')
    a('v_lshl_add_u32 v12, v7, 1, v12')
    a('v_lshrrev_b32 v13, 1, v9')
    a('s_cmp_eq_u32 s11, -1')
    a('s_cselect_b64 s[26:27], -1, 0')
    a('v_cndmask_b32 v10, v10, v12, s[26:27]')
    a('v_cndmask_b32 v11, v11, v13, s[26:27]')
    a('v_bfe_u32 v12, v8, 1, 1'); a('v_bfe_u32 v13, v8, 3, 1')
    a('v_lshlrev_b32 v12, 2, v12')
    a('v_lshl_or_b32 v12, v13, 1, v12')
    a('v_xor_b32 v10, v10, v12')
    a('v_xor_b32 v11, v11, v13')
    a('v_lshlrev_b32 v9, 7, v8')
    a('v_lshl_add_u32 v9, v10, 4, v9')
    a('v_lshl_add_u32 v9, v11, 3, v9')
    a('v_mul_lo_u32 v10, v7, s10')
    a('v_and_b32 v11, 63, v0')
    a('v_lshl_add_u32 v10, v11, 4, v10')
    for r in range(4): a(f'v_mov_b32 v{12+r}, 0x3f803f80')
    for r in range(4): a(f'v_mov_b32 v{72+r}, 0')
    for i in range(14):
        a(f's_waitcnt vmcnt({13-i})')
        b = 16 + 4*i; t = 80 + 4*(i & 1)
        a(f'v_perm_b32 v{t}, v{b+1}, v{b}, v78')
        a(f'v_perm_b32 v{t+1}, v{b+3}, v{b+2}, v78')
        a(f'v_perm_b32 v{t+2}, v{b+1}, v{b}, v79')
        a(f'v_perm_b32 v{t+3}, v{b+3}, v{b+2}, v79')
        a(f'ds_write_b128 v4, v[{t}:{t+3}] offset:{4096*i}')
    a('s_waitcnt lgkmcnt(0)')
    a.stamp()
    a('s_barrier')
    for s in range(14):
        a(f'ds_read_b64_tr_b16 v[{16+4*s}:{17+4*s}], v9 offset:{4096*s}')
        a(f'ds_read_b64_tr_b16 v[{18+4*s}:{19+4*s}], v9 offset:{4096*s+512}')
        if s >= 6:
            s1 = s - 6
            a('s_waitcnt lgkmcnt(12)')
            a(f'global_store_dwordx4 v10, v[{16+4*s1}:{19+4*s1}], s[8:9] offset:{1024*(s1&3)}')
            a(f'v_mfma_f32_16x16x32_bf16 v[72:75], v[12:15], v[{16+4*s1}:{19+4*s1}], v[72:75]')
            if (s1 & 3) == 3: a('v_add_u32 v10, 4096, v10')
    for s1 in range(8, 14):
        a(f's_waitcnt lgkmcnt({2*(13-s1)})')
        a(f'global_store_dwordx4 v10, v[{16+4*s1}:{19+4*s1}], s[8:9] offset:{1024*(s1&3)}')
        a(f'v_mfma_f32_16x16x32_bf16 v[72:75], v[12:15], v[{16+4*s1}:{19+4*s1}], v[72:75]')
        if (s1 & 3) == 3: a('v_add_u32 v10, 4096, v10')
    if asmlib.STAMPS:
        a('s_waitcnt vmcnt(0)'); a.stamp(); a.stamp(); a.stamp(); a.stamp(); a.stamp(); a.stamp()
        a.stamp_dump(1, 20, vt=(100, 101))
    a('s_cmp_eq_u32 s11, -1')
    a('s_cbranch_scc1 K2_END')
    a('v_cmp_gt_u32 vcc, 16, v11')
    a('s_and_saveexec_b64 s[26:27], vcc')
    a('s_lshl_b32 s25, s23, 8')
    a('s_add_u32 s25, s25, s11')
    a('v_lshrrev_b32 v6, 1, v7')
    a('v_lshl_add_u32 v5, v6, 4, v5')
    a('v_and_b32 v6, 1, v7')
    a('v_lshl_add_u32 v5, v5, 1, v6')
    a('v_lshl_add_u32 v5, v5, 2, s25')
    a('global_store_dword v5, v72, s[20:21]')
    a.label('K2_END')
    a('s_endpgm')
    kernel('conv_kernel', (294, 1, 1), (256, 1, 1), 78848 + 256, 256, 40, a, keepv=True)

def gen_all(G):
    gen_k2(G)
    try:
        import gen3
        gen3.gen_all(G)
    except ImportError:
        pass
```

```python
import math, asmlib, os
from asmlib import Asm
from layout import *
LOG2E = 1.4426950408889634
GC0 = -2 * LOG2E * math.sqrt(2 / math.pi)
GC1 = GC0 * 0.044715

def gelu_pair(G, a, x0, x1, t0, t1, sc0, dst):
    f32 = G.f32
    a(f'v_cvt_pk_bf16_f32 v{t0}, v{x0}, v{x1}')
    G.unpack2(a, x0, x1, t0)
    a(f'v_mul_f32 v{t0}, v{x0}, v{x0}')
    a(f'v_mul_f32 v{t1}, v{x1}, v{x1}')
    a(f'v_fmaak_f32 v{t0}, {f32(GC1)}, v{t0}, {f32(GC0)}') if False else None
    a(f'v_mul_f32 v{t0}, {f32(GC1)}, v{t0}')
    a(f'v_mul_f32 v{t1}, {f32(GC1)}, v{t1}')
    a(f'v_add_f32 v{t0}, s{sc0}, v{t0}')
    a(f'v_add_f32 v{t1}, s{sc0}, v{t1}')
    a(f'v_mul_f32 v{t0}, v{t0}, v{x0}')
    a(f'v_mul_f32 v{t1}, v{t1}, v{x1}')
    a(f'v_exp_f32 v{t0}, v{t0}')
    a(f'v_exp_f32 v{t1}, v{t1}')
    a(f'v_add_f32 v{t0}, 1.0, v{t0}')
    a(f'v_add_f32 v{t1}, 1.0, v{t1}')
    a(f'v_rcp_f32 v{t0}, v{t0}')
    a(f'v_rcp_f32 v{t1}, v{t1}')
    a(f'v_mul_f32 v{x0}, v{x0}, v{t0}')
    a(f'v_mul_f32 v{x1}, v{x1}, v{t1}')
    a(f'v_cvt_pk_bf16_f32 v{dst}, v{x0}, v{x1}')

def stats_from_partials(G, a, base, n, mb, rinv, t):
    for k in range(1, n):
        a(f'v_add_f32 v{base}, v{base}, v{base+2*k}')
        a(f'v_add_f32 v{base+1}, v{base+1}, v{base+2*k+1}')
    a(f'v_mul_f32 v{base}, {G.f32(1.0/448)}, v{base}')
    a(f'v_mul_f32 v{base+1}, {G.f32(1.0/448)}, v{base+1}')
    a(f'v_fma_f32 v{base+1}, -v{base}, v{base}, v{base+1}')
    a(f'v_max_f32 v{base+1}, 0, v{base+1}')
    G.ln_scalars(a, base, base + 1, mb, rinv, t)

def gen_k3(G):
    from gen4 import gelu8, gelu_consts
    f32, srd, rnd_bf16, unpack2, kernel = G.f32, G.srd, G.rnd_bf16, G.unpack2, G.kernel
    a = Asm()
    XL = 17920; AT = 35840; ST3 = 52224; MB = 52480; LDSZ = 52480 + 3584
    pr = lambda r: f'v[{r}:{r+1}]'
    a('s_cmp_ge_u32 s2, 256')
    a('s_cbranch_scc1 K3_END')
    a.stamp(real=True); a.stamp()
    a('s_load_dwordx2 s[4:5], s[0:1], 144')
    a('s_load_dwordx2 s[6:7], s[0:1], 0')
    a('s_and_b32 s3, s2, 7'); a('s_lshl_b32 s3, s3, 4'); a('s_lshr_b32 s8, s2, 4'); a('s_add_u32 s3, s3, s8')
    a('s_bfe_u32 s8, s2, 0x10003')
    a('v_lshrrev_b32 v1, 6, v0')
    a('v_readfirstlane_b32 s9, v1')
    a('v_bfe_u32 v4, v0, 4, 2')
    a('v_and_b32 v5, 15, v0')
    a('s_cmp_lt_u32 s9, 4')
    a('s_cbranch_scc1 K3_LN')
    a('s_sub_u32 s9, s9, 4')
    a('v_subrev_u32 v1, 256, v0')
    a('v_lshrrev_b32 v6, 1, v1')
    a('v_and_b32 v7, 1, v1')
    a('v_lshlrev_b32 v8, 12, v6')
    a('v_lshl_add_u32 v8, v7, 4, v8')
    a('s_lshl_b32 s12, s3, 5')
    a('v_add_u32 v8, s12, v8')
    a(f'v_add_u32 v9, {224*4096}, v8')
    a('v_mul_u32_u24 v10, 40, v6')
    a('v_lshl_add_u32 v10, v7, 4, v10')
    a('s_mul_i32 s13, s3, 14336')
    a('v_lshl_add_u32 v12, v1, 4, s13')
    a('v_mul_u32_u24 v15, 1171, v1')
    a('v_lshrrev_b32 v15, 16, v15')
    a(f'v_mul_u32_u24 v15, {1088-896}, v15')
    a('v_lshl_add_u32 v11, v1, 4, v15')
    a('s_mul_i32 s12, s8, 14'); a('s_lshl_b32 s13, s9, 1'); a('s_add_u32 s12, s12, s13')
    a('s_lshl_b32 s13, s12, 6')
    a('v_lshl_add_u32 v14, v5, 3, s13')
    a('s_mul_i32 s13, s12, 14336')
    a('v_and_b32 v15, 63, v0')
    a('v_lshl_add_u32 v15, v15, 4, s13')
    a('v_add_u32 v13, 7168, v12')
    a('s_waitcnt lgkmcnt(0)')
    a.stamp()
    a(f's_add_u32 s16, s4, {GT}'); a('s_addc_u32 s17, s5, 0')
    a(f's_add_u32 s20, s4, {CS1}'); a('s_addc_u32 s21, s5, 0')
    a(f's_add_u32 s22, s4, {W1P}'); a('s_addc_u32 s23, s5, 0')
    S = 140
    a(f'global_load_dwordx4 v[{S}:{S+3}], v8, s[16:17]')
    a(f'global_load_dwordx4 v[{S+4}:{S+7}], v9, s[16:17]')
    a(f'global_load_dwordx4 v[{S+8}:{S+11}], v12, s[6:7]')
    a(f'global_load_dwordx4 v[{S+12}:{S+15}], v13, s[6:7]')
    srd(a, 28, 4, 5, MOD + 3*1792, 4*1792)
    a('v_lshlrev_b32 v16, 4, v1')
    a('v_add_u32 v17, 2*1792, v16')
    a('v_cmp_gt_u32 vcc, 112, v1')
    a('v_cndmask_b32 v17, v17, v16, vcc')
    a('buffer_load_dwordx4 v[20:23], v17, s[28:31], 0 offen')
    W = 24; CSR = 2
    def wl(k):
        s_, jj = k >> 1, k & 1
        r = W + 4*(14*jj + s_)
        off = 14336*jj + 1024*s_
        a(f'buffer_load_dwordx4 v[{r}:{r+3}], v15, s[24:27], s{32 + off//4096} offen offset:{off % 4096}')
    srd(a, 24, 4, 5, W1P, 448*448*2)
    for i in range(7): a(f's_mov_b32 s{32+i}, {4096*i}')
    a('global_load_dwordx2 v[2:3], v14, s[20:21]')
    a('s_barrier')
    NB = int(os.environ.get('K3NB', '4'))
    for k in range(NB): wl(k)
    a(f's_waitcnt vmcnt({NB+1})')
    a(f'ds_write_b64 v10, v[{S}:{S+1}]')
    a(f'ds_write_b64 v10, v[{S+2}:{S+3}] offset:8')
    a(f'ds_write_b64 v10, v[{S+4}:{S+5}] offset:8960')
    a(f'ds_write_b64 v10, v[{S+6}:{S+7}] offset:8968')
    a(f'ds_write_b128 v11, v[{S+8}:{S+11}] offset:{XL}')
    a(f'ds_write_b128 v11, v[{S+12}:{S+15}] offset:{XL+8*1088}')
    a('v_cmp_gt_u32 vcc, 224, v1')
    a('s_and_saveexec_b64 s[40:41], vcc')
    a(f'ds_write_b128 v16, v[20:23] offset:{MB}')
    a('s_mov_b64 exec, s[40:41]')
    a('s_waitcnt lgkmcnt(0)')
    a.stamp()
    a('s_barrier')
    for k in range(NB, 28): wl(k)
    a('v_xor_b32 v6, v4, v5')
    a('v_lshlrev_b32 v7, 10, v5')
    a(f'v_add_u32 v7, {AT}, v7')
    for u in range(4):
        a(f'v_xor_b32 v{8+u}, {4*u}, v6')
        a(f'v_lshl_add_u32 v{8+u}, v{8+u}, 4, v7')
    a('v_lshlrev_b32 v12, 4, v4')
    a('s_lshl_b32 s13, s3, 4')
    a('v_lshl_add_u32 v6, v4, 2, s13')
    a('v_mul_u32_u24 v6, 896, v6')
    a('v_lshl_add_u32 v6, v5, 2, v6')
    a('s_lshl_b32 s12, s12, 5')
    a('v_add_u32 v6, s12, v6')
    a(f's_add_u32 s20, s4, {HH}'); a('s_addc_u32 s21, s5, 0')
    a.stamp()
    a('s_barrier')
    a.stamp()
    AF = 136; ACC = 16
    a(f'ds_read_b128 v[160:163], v12 offset:{ST3}')
    a(f'ds_read_b128 v[164:167], v12 offset:{ST3+64}')
    def rd(s_): a(f'ds_read_b128 v[{AF+4*(s_%5)}:{AF+4*(s_%5)+3}], v{8+(s_&3)} offset:{256*(s_>>2)}')
    for s_ in range(5): rd(s_)
    a('s_waitcnt vmcnt(28) lgkmcnt(5)')
    for jj in range(2):
        for r in range(4): a(f'v_mul_f32 v{ACC+4*jj+r}, v{160+r}, v{CSR+jj}')
    for s_ in range(14):
        a(f's_waitcnt vmcnt({26-2*s_}) lgkmcnt({min(4, 13-s_)})')
        for jj in range(2):
            w = W + 4*(14*jj + s_)
            a(f'v_mfma_f32_16x16x32_bf16 v[{ACC+4*jj}:{ACC+4*jj+3}], v[{AF+4*(s_%5)}:{AF+4*(s_%5)+3}], v[{w}:{w+3}], v[{ACC+4*jj}:{ACC+4*jj+3}]')
        if s_ + 5 < 14: rd(s_ + 5)
    a.stamp()
    gelu_consts(G, a, 24)
    gelu8(G, a, ACC, ACC + 4, 164, 32, 24, 40)
    for r in range(4): a(f'global_store_dword v6, v{40+r}, s[20:21] offset:{896*r}')
    a('s_waitcnt vmcnt(0)') if asmlib.STAMPS else None
    a.stamp_dump(2, 4, vt=(150, 151))
    a('s_endpgm')
    a.label('K3_LN')
    a.nst = 2 if asmlib.STAMPS else 0
    a('v_and_b32 v2, 3, v0')
    a('v_bfe_u32 v3, v0, 2, 2')
    a('v_lshlrev_b32 v11, 6, v4')
    a('v_lshl_add_u32 v11, v3, 4, v11')
    X, GG, CB, SB, T = 16, 30, 44, 72, 100
    a('s_waitcnt lgkmcnt(0)')
    a.stamp()
    a('s_barrier')
    a('v_lshlrev_b32 v6, 4, v4')
    a('v_lshl_add_u32 v6, v2, 2, v6')
    a('v_add_u32 v6, v6, v3')
    a('v_mul_u32_u24 v6, 40, v6')
    a('s_lshl_b32 s12, s9, 3')
    a('v_add_u32 v6, s12, v6')
    a('s_lshl_b32 s12, s9, 2')
    a('v_add_u32 v12, s12, v2')
    a('v_mul_u32_u24 v8, 1088, v12')
    a('v_lshrrev_b32 v9, 1, v11')
    a('v_add_u32 v8, v8, v9')
    a('v_mov_b32 v15, 0x3f803f80')
    a('v_lshrrev_b32 v13, 1, v3')
    a('v_lshl_add_u32 v13, v4, 1, v13')
    a('v_xor_b32 v13, v13, v12')
    a('v_lshlrev_b32 v13, 4, v13')
    a('v_lshl_add_u32 v13, v12, 10, v13')
    a('v_and_b32 v14, 1, v3')
    a('v_lshl_add_u32 v13, v14, 3, v13')
    a(f'v_add_u32 v13, {AT}, v13')
    a('v_xor_b32 v14, 128, v13')
    a('v_lshlrev_b32 v10, 2, v12')
    a('v_and_b32 v7, 63, v0')
    a('v_cmp_gt_u32 s[28:29], 4, v7')
    a.stamp()
    a('s_barrier')
    a.stamp()
    for i in range(7):
        a(f'ds_read_b64_tr_b16 v[{GG+2*i}:{GG+2*i+1}], v6 offset:{2560*i}')
        a(f'ds_read_b64 v[{X+2*i}:{X+2*i+1}], v8 offset:{XL+128*i}')
    Q = range(14)
    P = 128
    for q in Q:
        if q % 2 == 0: a(f's_waitcnt lgkmcnt({12-q})')
        unpack2(a, T+2*q, T+2*q+1, X+q); unpack2(a, P, P+1, GG+q)
        a(f'v_pk_add_f32 {pr(T+2*q)}, {pr(T+2*q)}, {pr(P)}')
    for i in range(7):
        a(f'ds_read_b128 v[{SB+4*i}:{SB+4*i+3}], v11 offset:{MB+256*i}')
        a(f'ds_read_b128 v[{CB+4*i}:{CB+4*i+3}], v11 offset:{MB+1792+256*i}')
    for q in Q: a(f'v_cvt_pk_bf16_f32 v{X+q}, v{T+2*q}, v{T+2*q+1}')
    def stats(src, mb, rinv):
        a(f'v_dot2_f32_bf16 v142, v{src}, v15, 0')
        a(f'v_dot2_f32_bf16 v143, v{src}, v{src}, 0')
        for q in range(1, 14):
            a(f'v_dot2_f32_bf16 v142, v{src+q}, v15, v142')
            a(f'v_dot2_f32_bf16 v143, v{src+q}, v{src+q}, v143')
        for ro in (4, 8):
            for r in (142, 143): a(f'v_add_f32_dpp v{r}, v{r}, v{r} row_ror:{ro} row_mask:0xf bank_mask:0xf')
        for sw in ('v_permlane32_swap_b32', 'v_permlane16_swap_b32'):
            a('v_mov_b32 v144, v142'); a('v_mov_b32 v145, v143')
            a(f'{sw} v142, v144'); a(f'{sw} v143, v145')
            a('v_add_f32 v142, v142, v144'); a('v_add_f32 v143, v143, v145')
        stats_from_partials(G, a, 142, 1, mb, rinv, 148)
    for i in range(7): a(f'ds_write_b64 v8, v[{X+2*i}:{X+2*i+1}] offset:{XL+128*i}')
    stats(X, 146, 150)
    a('v_mov_b32 v147, v146'); a('v_mov_b32 v151, v150')
    for q in Q: unpack2(a, T+2*q, T+2*q+1, X+q)
    a('s_waitcnt lgkmcnt(0)')
    for q in Q: a(f'v_pk_add_f32 {pr(T+2*q)}, {pr(T+2*q)}, v[146:147] neg_lo:[0,1] neg_hi:[0,1]')
    for q in Q: a(f'v_pk_mul_f32 {pr(CB+2*q)}, {pr(CB+2*q)}, v[150:151]')
    for q in Q: a(f'v_pk_fma_f32 {pr(T+2*q)}, {pr(T+2*q)}, {pr(CB+2*q)}, {pr(SB+2*q)}')
    for q in Q: a(f'v_cvt_pk_bf16_f32 v{GG+q}, v{T+2*q}, v{T+2*q+1}')
    for i in range(7): a(f'ds_write_b64 v{13 + (i&1)}, v[{GG+2*i}:{GG+2*i+1}] offset:{256*(i>>1)}')
    stats(GG, 146, 150)
    a('v_sub_f32 v146, 0, v146')
    a('s_and_saveexec_b64 s[22:23], s[28:29]')
    a(f'ds_write_b32 v10, v146 offset:{ST3}')
    a(f'ds_write_b32 v10, v150 offset:{ST3+64}')
    a('s_mov_b64 exec, s[22:23]')
    a('s_waitcnt lgkmcnt(0)')
    a.stamp()
    a('s_barrier')
    a.stamp()
    a('s_mul_i32 s12, s8, 28')
    a('s_mul_i32 s13, s3, 14336')
    srd(a, 16, 4, 5, X1, ACT_BYTES)
    srd(a, 20, 4, 5, H2, ACT_BYTES)
    for it in range(2):
        b = 16 + 8*it
        a(f'v_add_u32 v2, {256*it}, v0')
        a('v_mul_u32_u24 v3, 2341, v2')
        a('v_lshrrev_b32 v3, 16, v3')
        a('v_mul_u32_u24 v4, 28, v3')
        a('v_sub_u32 v4, v2, v4')
        a('v_add_u32 v4, s12, v4')
        a('v_and_b32 v9, 15, v3')
        a('v_mul_u32_u24 v5, 1088, v9')
        a('v_lshl_add_u32 v5, v4, 4, v5')
        a(f'ds_read_b128 v[{b}:{b+3}], v5 offset:{XL}')
        a('v_xor_b32 v6, v4, v9')
        a('v_lshlrev_b32 v6, 4, v6')
        a('v_lshl_add_u32 v6, v9, 10, v6')
        a(f'ds_read_b128 v[{b+4}:{b+7}], v6 offset:{AT}')
        a('v_mul_u32_u24 v7, 896, v3')
        a('v_lshl_add_u32 v7, v4, 4, v7')
        a(f'v_add_u32 v{40+it}, s13, v7')
    a('v_cmp_gt_u32 vcc, 16, v3')
    a('v_mov_b32 v7, 0x80000000')
    a('v_cndmask_b32 v41, v7, v41, vcc')
    for it in range(2):
        b = 16 + 8*it
        a(f's_waitcnt lgkmcnt({2-2*it})')
        a(f'buffer_store_dwordx4 v[{b}:{b+3}], v{40+it}, s[16:19], 0 offen')
        a(f'buffer_store_dwordx4 v[{b+4}:{b+7}], v{40+it}, s[20:23], 0 offen')
    a('s_waitcnt vmcnt(0)') if asmlib.STAMPS else None
    a.stamp_dump(2, 4, vt=(150, 151))
    a.label('K3_END')
    a('s_endpgm')
    kernel('ln_gemm1_kernel', (256, 1, 1), (704, 1, 1), LDSZ, 168, 48, a, keepv=True)

def gen_all(G):
    gen_k3(G)
    import gen4
    gen4.gen_all(G)
```

```python
import asmlib, os
from asmlib import Asm
from layout import *
from gen3 import gelu_pair, stats_from_partials, GC0

def exch8(a, acc, lo, hi, t, mask):
    for k in range(2):
        a(f'v_cndmask_b32 v{t+k}, v{acc+k}, v{acc+2+k}, {mask}')
    for k in range(2):
        a(f'v_mov_b32_dpp v{t+2+k}, v{t+k} row_ror:8 row_mask:0xf bank_mask:0xf')
    for k in range(2):
        a(f'v_cndmask_b32 v{lo+2*k}, v{t+2+k}, v{acc+k}, {mask}')
        a(f'v_cndmask_b32 v{lo+2*k+1}, v{acc+2+k}, v{t+2+k}, {mask}')

def dma_lane(a, row, gsw, lane, t):
    a(f'v_lshrrev_b32 v{row}, 2, v{lane}')
    a(f'v_lshrrev_b32 v{t}, 4, v{lane}')
    a(f'v_sub_u32 v{t}, 0, v{t}')
    a(f'v_xor_b32 v{gsw}, v{t}, v{lane}')
    a(f'v_and_b32 v{gsw}, 3, v{gsw}')

def frag_rd_addr(a, d, tok, g, t):
    a(f'v_lshrrev_b32 v{t}, 2, v{tok}')
    a(f'v_sub_u32 v{t}, 0, v{t}')
    a(f'v_xor_b32 v{t}, v{t}, v{g}')
    a(f'v_and_b32 v{t}, 3, v{t}')
    a(f'v_lshlrev_b32 v{t}, 4, v{t}')
    a(f'v_lshl_add_u32 v{d}, v{tok}, 6, v{t}')

def gen_k4(G):
    f32, srd, rnd_bf16, unpack2, kernel = G.f32, G.srd, G.rnd_bf16, G.unpack2, G.kernel
    a = Asm()
    ST = 32768; LDSZ = 32768 + 2048
    a('s_cmp_ge_u32 s2, 256')
    a('s_cbranch_scc1 K4_END')
    a.stamp(real=True); a.stamp()
    a('s_load_dwordx2 s[4:5], s[0:1], 144')
    a('s_and_b32 s3, s2, 7'); a('s_lshl_b32 s3, s3, 3'); a('s_lshr_b32 s8, s2, 5'); a('s_add_u32 s3, s3, s8')
    a('s_bfe_u32 s8, s2, 0x20003')
    a('s_lshl_b32 s3, s3, 5')
    a('v_lshrrev_b32 v1, 6, v0')
    a('v_readfirstlane_b32 s9, v1')
    a('v_mul_u32_u24 v2, 1171, v0')
    a('v_lshrrev_b32 v2, 16, v2')
    a('v_mul_u32_u24 v3, 56, v2')
    a('v_sub_u32 v3, v0, v3')
    a('v_mul_u32_u24 v4, 4682, v3')
    a('v_lshrrev_b32 v4, 16, v4')
    a('v_lshrrev_b32 v5, 1, v4')
    a('v_add_u32 v5, 1, v5')
    a('v_and_b32 v6, 1, v4')
    a('v_lshl_add_u32 v6, v6, 1, -1')
    a('v_mul_i32_i24 v5, v5, v6')
    a('v_add3_u32 v5, v5, v2, s3')
    a('v_mul_i32_i24 v5, 896, v5')
    a('v_lshl_add_u32 v5, v3, 4, v5')
    a('v_xor_b32 v6, v3, v2')
    a('v_lshlrev_b32 v6, 4, v6')
    a('v_lshl_add_u32 v6, v2, 10, v6')
    a('v_xor_b32 v7, 128, v6')
    a('v_and_b32 v8, 15, v0')
    a('v_bfe_u32 v9, v0, 4, 2')
    a('s_mul_i32 s10, s8, 7'); a('s_add_u32 s10, s10, s9')
    a('v_lshrrev_b32 v10, 3, v8')
    a('v_lshlrev_b32 v10, 1, v10')
    a('v_lshl_add_u32 v13, v9, 2, v10')
    a('v_add_u32 v10, s3, v13')
    a('v_mul_u32_u24 v10, 896, v10')
    a('v_and_b32 v11, 7, v8')
    a('v_lshl_add_u32 v10, v11, 2, v10')
    a('s_lshl_b32 s11, s10, 5')
    a('v_add_u32 v10, s11, v10')
    a('v_add_u32 v11, 14336, v10')
    a('s_mul_i32 s11, s10, 14336')
    a('v_and_b32 v12, 63, v0')
    a('v_lshl_add_u32 v12, v12, 4, s11')
    a('s_waitcnt lgkmcnt(0)')
    a.stamp()
    srd(a, 16, 4, 5, HH, ACT_BYTES)
    for i in range(4):
        if i: a('v_add_u32 v5, 7168, v5')
        a(f'buffer_load_dwordx4 v[{16+4*i}:{19+4*i}], v5, s[16:19], 0 offen')
    a(f's_add_u32 s22, s4, {W2P}'); a('s_addc_u32 s23, s5, 0')
    a(f's_add_u32 s20, s4, {H2}'); a('s_addc_u32 s21, s5, 0')
    a('s_barrier')
    W = 40
    def wl(k):
        if k and k % 4 == 0: a('v_add_u32 v12, 4096, v12')
        a(f'global_load_dwordx4 v[{W+4*k}:{W+4*k+3}], v12, s[22:23] offset:{1024*(k&3)}')
    NB = 4
    for k in range(NB): wl(k)
    a('v_xor_b32 v15, v9, v8')
    a('v_lshlrev_b32 v14, 10, v8')
    for u in range(4):
        a(f'v_xor_b32 v{96+u}, {4*u}, v15')
        a(f'v_lshl_add_u32 v{96+u}, v{96+u}, 4, v14')
    for r in range(8): a(f'v_mov_b32 v{100+r}, 0')
    a('v_cmp_gt_u32 s[26:27], 8, v8')
    for i in range(4):
        a(f's_waitcnt vmcnt({NB+3-i})')
        a(f'ds_write_b128 v{6+(i&1)}, v[{16+4*i}:{19+4*i}] offset:{8192*i}')
    for k in range(NB, 14): wl(k)
    for mt in range(2):
        for k in range(2): a(f'global_load_dword v{32+2*mt+k}, v{10+mt}, s[20:21] offset:{896*k}')
    a('s_waitcnt lgkmcnt(0)')
    a.stamp()
    a('s_barrier')
    a.stamp()
    AF = 108
    for s in range(14):
        for mt in range(2):
            r = AF + 8*s + 4*mt
            a(f'ds_read_b128 v[{r}:{r+3}], v{96+(s&3)} offset:{256*(s>>2)+16384*mt}')
    for s in range(14):
        a(f's_waitcnt vmcnt({17-s}) lgkmcnt({min(15, 26-2*s)})')
        for mt in range(2):
            r = AF + 8*s + 4*mt
            a(f'v_mfma_f32_16x16x32_bf16 v[{100+4*mt}:{103+4*mt}], v[{r}:{r+3}], v[{W+4*s}:{W+4*s+3}], v[{100+4*mt}:{103+4*mt}]')
    a.stamp()
    a(f's_add_u32 s20, s4, {X1P}'); a('s_addc_u32 s21, s5, 0')
    a('v_mov_b32 v15, 0x3f803f80')
    a('s_waitcnt vmcnt(0)')
    for mt in range(2): exch8(a, 100 + 4*mt, 40 + 4*mt, None, 16, 's[26:27]')
    for q in range(4): unpack2(a, 52+2*q, 53+2*q, 32+q)
    for q in range(4): a(f'v_pk_add_f32 v[{40+2*q}:{41+2*q}], v[{40+2*q}:{41+2*q}], v[{52+2*q}:{53+2*q}]')
    for q in range(4):
        a(f'v_cvt_pk_bf16_f32 v{48+q}, v{40+2*q}, v{41+2*q}')
    for q in range(4):
        a(f'global_store_dword v{10+(q>>1)}, v{48+q}, s[20:21] offset:{896*(q&1)}')
        a(f'v_dot2_f32_bf16 v{56+2*q}, v{48+q}, v15, 0')
        a(f'v_dot2_f32_bf16 v{57+2*q}, v{48+q}, v{48+q}, 0')
    for dp in ('quad_perm:[1,0,3,2]', 'quad_perm:[2,3,0,1]', 'row_half_mirror'):
        for r in range(8): a(f'v_add_f32_dpp v{56+r}, v{56+r}, v{56+r} {dp} row_mask:0xf bank_mask:0xf')
    a('s_lshl_b32 s11, s9, 3')
    a('v_lshl_add_u32 v13, v13, 6, s11')
    a('v_and_b32 v14, 7, v0')
    a('v_cmp_eq_u32 vcc, 0, v14')
    a('s_and_saveexec_b64 s[24:25], vcc')
    for q in range(4): a(f'ds_write_b64 v13, v[{56+2*q}:{57+2*q}] offset:{ST+1024*(q>>1)+64*(q&1)}')
    a('s_mov_b64 exec, s[24:25]')
    a('s_waitcnt lgkmcnt(0)')
    a('s_barrier')
    a('v_cmp_gt_u32 vcc, 32, v0')
    a('s_and_saveexec_b64 s[24:25], vcc')
    a('s_cbranch_execz K4_DONE')
    a('v_lshlrev_b32 v13, 6, v0')
    for k in range(4): a(f'ds_read_b128 v[{16+4*k}:{19+4*k}], v13 offset:{ST+16*k}')
    a('v_add_u32 v14, s3, v0')
    a('v_lshlrev_b32 v14, 5, v14')
    a('s_lshl_b32 s11, s8, 3')
    a('v_add_u32 v14, s11, v14')
    a(f's_add_u32 s20, s4, {STAT}'); a('s_addc_u32 s21, s5, 0')
    a('s_waitcnt lgkmcnt(0)')
    for k in range(1, 7):
        a(f'v_add_f32 v16, v16, v{16+2*k}'); a(f'v_add_f32 v17, v17, v{17+2*k}')
    a('global_store_dwordx2 v14, v[16:17], s[20:21]')
    a.label('K4_DONE')
    a('s_waitcnt vmcnt(0)') if asmlib.STAMPS else None
    a.stamp_dump(3, 4)
    a.label('K4_END')
    a('s_endpgm')
    kernel('gemm2_kernel', (256, 1, 1), (448, 1, 1), LDSZ, 220, 40, a)

def gelu8(G, a, A0, A1, RI, T, C, dst, NMr=None, CS=None, nopk=False):
    P = [A0, A0 + 2, A1, A1 + 2]
    pr = lambda r: f'v[{r}:{r+1}]'
    def op2(kind, d, x, y, z=None):
        if not nopk:
            a(f'v_pk_{kind}_f32 {pr(d)}, {pr(x)}, {pr(y)}' + (f', {pr(z)}' if z is not None else ''))
        else:
            for k in range(2): a(f'v_{kind}_f32 v{d+k}, v{x+k}, v{y+k}' + (f', v{z+k}' if z is not None else ''))
    if NMr is not None:
        for i, p in enumerate(P): op2('fma', p, NMr + 2*(i&1), CS + 2*(i>>1), p)
    for i, p in enumerate(P): op2('mul', p, p, RI + 2*(i&1))
    for i, p in enumerate(P): op2('mul', T+2*i, p, p)
    for i, p in enumerate(P): op2('fma', T+2*i, T+2*i, C, C+2)
    for i, p in enumerate(P): op2('mul', T+2*i, T+2*i, p)
    for i in range(8): a(f'v_exp_f32 v{T+i}, v{T+i}')
    for i, p in enumerate(P): op2('add', T+2*i, T+2*i, C+4)
    for i in range(8): a(f'v_rcp_f32 v{T+i}, v{T+i}')
    for i, p in enumerate(P): op2('mul', p, p, T+2*i)
    for r in range(4): a(f'v_cvt_pk_bf16_f32 v{dst+r}, v{A0+r}, v{A1+r}')

def gelu_consts(G, a, C):
    from gen3 import GC1
    for i, v in enumerate((GC1, GC1, GC0, GC0, 1.0, 1.0)): a(f'v_mov_b32 v{C+i}, {G.f32(v)}')

class Cap:
    def __init__(self): self.l = []
    def __call__(self, x): self.l.append(x)

def gen_k5(G):
    f32, srd, rnd_bf16, unpack2, kernel = G.f32, G.srd, G.rnd_bf16, G.unpack2, G.kernel
    a = Asm()
    AB = 114688; NSA = 5; RS = AB + NSA * 8192; LDSZ = RS + 1024; NST = 14
    a('s_cmp_ge_u32 s2, 224')
    a('s_cbranch_scc1 K5_END')
    a.stamp(real=True); a.stamp()
    a('s_load_dwordx2 s[4:5], s[0:1], 144')
    a('s_lshr_b32 s6, s2, 3')
    a('s_cmp_ge_u32 s6, 14'); a('s_cselect_b32 s7, 1, 0')
    a('s_mul_i32 s8, s7, 14'); a('s_sub_u32 s8, s6, s8')
    a('s_and_b32 s3, s2, 7'); a('s_lshl_b32 s3, s3, 1'); a('s_add_u32 s3, s3, s7')
    a('s_lshl_b32 s3, s3, 7')
    a('v_lshrrev_b32 v1, 6, v0')
    a('v_readfirstlane_b32 s9, v1')
    a('v_and_b32 v2, 15, v0'); a('v_bfe_u32 v3, v0, 4, 2'); a('v_and_b32 v4, 63, v0')
    a('s_cmp_lt_u32 s9, 4')
    a('s_cbranch_scc1 K5_COMP')
    if os.environ.get('PRIO'): a('s_setprio 2')
    a('s_sub_u32 s9, s9, 4')
    a('v_lshrrev_b32 v5, 3, v4')
    a('v_and_b32 v6, 6, v5')
    a('v_xor_b32 v6, v6, v4')
    a('v_and_b32 v6, 7, v6')
    a('s_lshl_b32 s10, s9, 4'); a('s_add_u32 s10, s10, s3')
    a('v_add_u32 v5, s10, v5')
    a('v_mul_u32_u24 v5, 896, v5')
    a('v_lshl_add_u32 v8, v6, 4, v5')
    a('v_add_u32 v9, 7168, v8'); a('v_add_u32 v10, 57344, v8'); a('v_add_u32 v11, 57344+7168, v8')
    a('s_lshl_b32 s10, s8, 3'); a('s_lshl_b32 s11, s9, 1'); a('s_add_u32 s10, s10, s11')
    a('s_mul_i32 s11, s10, 14336')
    a('v_lshl_add_u32 v12, v4, 4, s11')
    a('v_add_u32 v13, 14336, v12')
    a('s_lshl_b32 s12, s9, 12')
    a('s_lshl_b32 s15, s9, 11')
    a('s_waitcnt lgkmcnt(0)')
    srd(a, 16, 4, 5, X1P, ACT_BYTES)
    srd(a, 28, 4, 5, W3P, 448*1792*2)
    cnt = []
    def stage(q):
        h, p = q // 7, q % 7
        a(f's_mov_b32 s14, {128*p}')
        for b in range(2):
            a(f's_add_u32 m0, s15, {AB + (q % NSA)*8192 + 1024*b}')
            a(f'buffer_load_dwordx4 v{8+2*h+b}, s[16:19], s14 offen lds')
        n = 2
        if h == 0:
            a(f's_mov_b32 s13, {2048*p}')
            for e in range(2):
                for jj in range(2):
                    a(f's_add_u32 m0, s12, {16384*p + 1024*(2*e+jj) - 1024*e}')
                    a(f'buffer_load_dwordx4 v{12+jj}, s[28:31], s13 offen offset:{1024*e} lds')
            n = 6
        cnt.append(n)
    LOOK = 4
    for q in range(LOOK): stage(q)
    for b in range(NST):
        a(f's_waitcnt vmcnt({sum(cnt[b+1:])})')
        a('s_barrier')
        if len(cnt) < NST: stage(len(cnt))
    a('s_endpgm')
    a.label('K5_COMP')
    a('s_lshl_b32 s10, s8, 3'); a('s_lshl_b32 s11, s9, 1'); a('s_add_u32 s10, s10, s11')
    a('s_lshl_b32 s11, s10, 6')
    a('v_lshl_add_u32 v8, v2, 3, s11')
    a('v_add_u32 v9, s3, v0')
    a('v_lshlrev_b32 v9, 5, v9')
    a('v_cmp_gt_u32 vcc, 128, v0')
    a('v_mov_b32 v10, 0x80000000')
    a('v_cndmask_b32 v9, v10, v9, vcc')
    a('s_waitcnt lgkmcnt(0)')
    a.stamp()
    srd(a, 20, 4, 5, STAT, 65536)
    a('buffer_load_dwordx4 v[16:19], v9, s[20:23], 0 offen')
    a('buffer_load_dwordx4 v[20:23], v9, s[20:23], 0 offen offset:16')
    a(f's_add_u32 s24, s4, {CS3}'); a('s_addc_u32 s25, s5, 0')
    a('global_load_dwordx2 v[24:25], v8, s[24:25]')
    a('v_and_b32 v10, 6, v2')
    a('v_xor_b32 v10, v10, v3')
    a('v_lshlrev_b32 v10, 4, v10')
    a('v_lshl_add_u32 v10, v2, 7, v10')
    a(f'v_add_u32 v10, {AB}, v10')
    a('v_xor_b32 v11, 64, v10')
    a('s_lshl_b32 s11, s9, 12')
    a('v_lshl_add_u32 v14, v4, 4, s11')
    a('v_add_u32 v15, 65536, v14')
    a('v_lshl_add_u32 v12, v3, 2, s3')
    a('v_mul_u32_u24 v12, 3584, v12')
    a('v_lshl_add_u32 v12, v2, 2, v12')
    a('s_lshl_b32 s11, s10, 5')
    a('v_add_u32 v12, s11, v12')
    a('v_add_u32 v13, 7168, v12')
    a(f's_add_u32 s24, s4, {HM}'); a('s_addc_u32 s25, s5, 0')
    gelu_consts(G, a, 26)
    ACC = 32; FB = 96; ST_ = 192; TT = 224
    for r in range(64): a(f'v_mov_b32 v{ACC+r}, 0')
    a.stamp()
    def rd(q, c=None):
        c = c or a
        p = q % 7; fb = FB + 48*(q & 1)
        for e in range(2):
            for jj in range(2): c(f'ds_read_b128 v[{fb+32+8*e+4*jj}:{fb+35+8*e+4*jj}], v{14 + (p >> 2)} offset:{16384*(p&3) + 1024*(2*e+jj)}')
            for m in range(4): c(f'ds_read_b128 v[{fb+16*e+4*m}:{fb+16*e+4*m+3}], v{10+e} offset:{(q % NSA)*8192 + 2048*m}')
    def rdstats(h):
        for m in range(4):
            a(f'ds_read_b128 v[{ST_+8*m}:{ST_+8*m+3}], v9 offset:{64*(4*h+m)}')
            a(f'ds_read_b128 v[{ST_+8*m+4}:{ST_+8*m+7}], v9 offset:{512+64*(4*h+m)}')
    a('s_barrier')
    a.stamp()
    rd(0)
    def epi(c, m, nopk):
        d = TT + 16 + 4*(m & 1)
        gelu8(G, c, ACC + 8*m, ACC + 8*m + 4, ST_ + 8*(m & 3) + 4, TT + 8*(m & 1), 26, d, ST_ + 8*(m & 3), 20, nopk)
        for r in range(4): c(f'global_store_dword v{12+(r>>1)}, v{d+r}, s[24:25] offset:{3584*(r&1)}' + os.environ.get('HMST', ''))
        if m < 7: c('v_add_u32 v12, 57344, v12'); c('v_add_u32 v13, 57344, v13')
    fill = Cap()
    NFILL = int(os.environ.get('NFILL', '3'))
    for m in range(NFILL): epi(fill, m, True)
    fl = fill.l
    def filler(budget):
        while fl and budget > 0:
            x = fl.pop(0); a(x)
            budget -= 8 if x.startswith(('v_exp', 'v_rcp')) else 4
    for q in range(NST):
        h = q // 7; fb = FB + 48*(q & 1)
        a('s_waitcnt lgkmcnt(0)')
        rc = Cap()
        if q + 1 < NST:
            a('s_barrier')
            rd(q + 1, rc)
        if q == 5: rdstats(0)
        for e in range(2):
            for m in range(4):
                for jj in range(2):
                    t = ACC + 8*(4*h + m) + 4*jj
                    a(f'v_mfma_f32_16x16x32_bf16 v[{t}:{t+3}], v[{fb+16*e+4*m}:{fb+16*e+4*m+3}], v[{fb+32+8*e+4*jj}:{fb+35+8*e+4*jj}], v[{t}:{t+3}]')
                    if rc.l: a(rc.l.pop(0))
                    if h == 1 and not (q == 7 and e == 0 and m < 2): filler(8)
        if q == 2:
            a('s_waitcnt vmcnt(0)')
            stats_from_partials(G, a, 16, 4, TT, TT+1, TT+2)
            a(f'v_sub_f32 v{TT}, 0, v{TT}')
            a('v_lshlrev_b32 v9, 2, v0')
            a('s_and_saveexec_b64 s[26:27], vcc')
            a(f'v_add_u32 v9, {RS}, v9')
            a(f'ds_write_b32 v9, v{TT}')
            a(f'ds_write_b32 v9, v{TT+1} offset:512')
            a('s_mov_b64 exec, s[26:27]')
            a('v_lshlrev_b32 v9, 4, v3')
            a(f'v_add_u32 v9, {RS}, v9')
            a('v_mov_b32 v20, v24'); a('v_mov_b32 v21, v24'); a('v_mov_b32 v22, v25'); a('v_mov_b32 v23, v25')
        if q in (6, 13): a.stamp()
    filler(1 << 30)
    for m in range(NFILL, 4): epi(a, m, False)
    rdstats(1)
    a('s_waitcnt lgkmcnt(0)')
    for m in range(4, 8): epi(a, m, False)
    a.stamp()
    a('s_waitcnt vmcnt(0)') if asmlib.STAMPS else None
    a.stamp_dump(4, 4)
    a.label('K5_END')
    a('s_endpgm')
    kernel('gemm3_kernel', (224, 1, 1), (512, 1, 1), LDSZ, 248, 40, a)

def gen_k6(G):
    f32, srd, rnd_bf16, unpack2, kernel = G.f32, G.srd, G.rnd_bf16, G.unpack2, G.kernel
    a = Asm()
    NSLOT = 5; SLOT = 32768; LDSZ = NSLOT * SLOT; NST = 14
    pr = lambda r: f'v[{r}:{r+1}]'
    a('s_cmp_ge_u32 s2, 224')
    a('s_cbranch_scc1 K6_END')
    a.stamp(real=True); a.stamp()
    a('s_load_dwordx2 s[4:5], s[0:1], 128')
    a('s_load_dwordx2 s[8:9], s[0:1], 144')
    a('s_lshr_b32 s10, s2, 3')
    a('s_mul_i32 s11, s10, 37'); a('s_lshr_b32 s11, s11, 8')
    a('s_mul_i32 s12, s11, 7'); a('s_sub_u32 s12, s10, s12')
    a('s_and_b32 s10, s2, 7'); a('s_lshl_b32 s10, s10, 2'); a('s_add_u32 s3, s10, s11')
    a('s_lshl_b32 s3, s3, 6')
    a('v_lshrrev_b32 v1, 6, v0')
    a('v_readfirstlane_b32 s13, v1')
    a('v_and_b32 v2, 15, v0'); a('v_bfe_u32 v3, v0, 4, 2'); a('v_and_b32 v4, 63, v0')
    a('s_cmp_lt_u32 s13, 4')
    a('s_cbranch_scc1 K6_COMP')
    if os.environ.get('PRIO'): a('s_setprio 2')
    a('s_sub_u32 s13, s13, 4')
    a('s_lshl_b32 s14, s11, 1'); a('s_add_u32 s14, s14, s12'); a('s_lshl_b32 s14, s14, 1')
    a('s_cmp_ge_u32 s14, 14'); a('s_cselect_b32 s15, 14, 0'); a('s_sub_u32 s14, s14, s15')
    if not int(os.environ.get('ROT', '0')): a('s_mov_b32 s14, 0')
    a('v_lshrrev_b32 v5, 3, v4')
    a('v_and_b32 v6, 6, v5')
    a('v_xor_b32 v6, v6, v4')
    a('v_and_b32 v6, 7, v6')
    a('s_lshl_b32 s10, s13, 4'); a('s_add_u32 s10, s10, s3')
    a('v_add_u32 v5, s10, v5')
    a('v_mul_u32_u24 v5, 3584, v5')
    a('v_lshl_add_u32 v5, v6, 4, v5')
    a('v_add_u32 v14, 28672, v5')
    a('s_lshl_b32 s10, s12, 2'); a('s_add_u32 s10, s10, s13')
    a('s_mul_i32 s11, s10, 57344')
    a('v_lshl_add_u32 v6, v4, 4, s11')
    a('s_lshl_b32 s24, s13, 11')
    a('s_lshl_b32 s25, s13, 12'); a('s_add_u32 s25, s25, 16384')
    a('s_waitcnt lgkmcnt(0)')
    srd(a, 16, 8, 9, HM, 2048*3584)
    srd(a, 20, 8, 9, W4P, 448*1792*2)
    def stage(p):
        sl = (p % NSLOT) * SLOT
        a('s_lshl_b32 s26, s14, 8'); a('s_lshl_b32 s27, s14, 12')
        for kp in range(2):
            for h in range(2):
                a(f's_add_u32 m0, s24, {sl + 8192*kp + 1024*h - 128*kp}')
                a(f'buffer_load_dwordx4 v{(5, 14)[h]}, s[16:19], s26 offen offset:{128*kp} lds')
        for ks in range(4):
            a(f's_add_u32 m0, s25, {sl}')
            a(f'buffer_load_dwordx4 v6, s[20:23], s27 offen offset:{1024*ks} lds')
        a('s_add_u32 s14, s14, 1'); a('s_cmp_eq_u32 s14, 14'); a('s_cselect_b32 s14, 0, s14')
    LOOK = int(os.environ.get('K6LOOK', '4'))
    for p in range(LOOK): stage(p)
    issued = LOOK
    for b in range(NST):
        a(f's_waitcnt vmcnt({8*(issued - 1 - b)})')
        a('s_barrier')
        if issued < NST: stage(issued); issued += 1
    a('s_endpgm')
    a.label('K6_COMP')
    a('s_lshl_b32 s10, s12, 2'); a('s_add_u32 s10, s10, s13')
    a('v_lshrrev_b32 v7, 3, v2')
    a('v_lshlrev_b32 v7, 1, v7')
    a('v_lshl_add_u32 v7, v3, 2, v7')
    a('v_add_u32 v7, s3, v7')
    a('v_mul_u32_u24 v7, 896, v7')
    a('v_and_b32 v8, 7, v2')
    a('v_lshl_add_u32 v7, v8, 2, v7')
    a('s_lshl_b32 s11, s10, 5')
    a('v_add_u32 v7, s11, v7')
    a('s_lshl_b32 s11, s10, 6')
    a('v_lshl_add_u32 v8, v8, 3, s11')
    a('v_and_b32 v9, 6, v2')
    a('v_xor_b32 v9, v9, v3')
    a('v_lshlrev_b32 v9, 4, v9')
    a('v_lshl_add_u32 v9, v2, 7, v9')
    a('v_xor_b32 v10, 64, v9')
    a('s_lshl_b32 s11, s13, 12'); a('s_add_u32 s11, s11, 16384')
    a('v_lshl_add_u32 v11, v4, 4, s11')
    for i in range(1, 3):
        for k in range(3): a(f'v_add_u32 v{9+3*i+k}, {65536*i}, v{9+k}')
    a('v_cmp_gt_u32 s[28:29], 8, v2')
    for r in range(16): a(f'v_mov_b32 v{32+r}, 0')
    a('s_waitcnt lgkmcnt(0)')
    a.stamp()
    a(f's_add_u32 s22, s8, {X1P}'); a('s_addc_u32 s23, s9, 0')
    a(f's_add_u32 s24, s8, {X1}'); a('s_addc_u32 s25, s9, 0')
    a(f's_add_u32 s26, s8, {MOD+5*1792}'); a('s_addc_u32 s27, s9, 0')
    AF = 64
    def rd(p, c=None):
        c = c or a
        sl = p % NSLOT
        b3 = 9 + 3*(sl >> 1); so = (sl & 1) * SLOT
        for ks in range(4):
            r = AF + 80*(p & 1) + 20*ks
            c(f'ds_read_b128 v[{r+16}:{r+19}], v{b3+2} offset:{so + 1024*ks}')
            for m in range(4): c(f'ds_read_b128 v[{r+4*m}:{r+4*m+3}], v{b3 + (ks & 1)} offset:{so + 8192*(ks>>1) + 2048*m}')
    a('s_barrier')
    a.stamp()
    rd(0)
    for p in range(NST):
        a('s_waitcnt lgkmcnt(0)')
        rc = Cap()
        if p + 1 < NST:
            a('s_barrier')
            rd(p + 1, rc)
        if p == 8:
            a('v_mov_b32 v18, v7')
            for mt in range(4):
                if mt: a('v_add_u32 v18, 14336, v18')
                for k in range(2):
                    a(f'global_load_dword v{224+2*mt+k}, v18, s[22:23] offset:{896*k}')
                    a(f'global_load_dword v{232+2*mt+k}, v18, s[24:25] offset:{896*k}')
            a('global_load_dwordx2 v[240:241], v8, s[26:27]')
        for ks in range(4):
            r = AF + 80*(p & 1) + 20*ks
            for m in range(4):
                a(f'v_mfma_f32_16x16x32_bf16 v[{32+4*m}:{35+4*m}], v[{r+4*m}:{r+4*m+3}], v[{r+16}:{r+19}], v[{32+4*m}:{35+4*m}]')
                for _ in range(2 if m == 0 else 1):
                    if rc.l: a(rc.l.pop(0))
        if p in (6, 13): a.stamp()
    a('s_waitcnt vmcnt(0)')
    X = 64
    for mt in range(4): exch8(a, 32 + 4*mt, X + 4*mt, None, 20, 's[28:29]')
    Q = range(8)
    for q in Q: unpack2(a, 80+2*q, 81+2*q, 224+q); unpack2(a, 104+2*q, 105+2*q, 232+q)
    for q in Q: a(f'v_pk_add_f32 {pr(X+2*q)}, {pr(X+2*q)}, {pr(80+2*q)}')
    for q in Q: a(f'v_pk_fma_f32 {pr(X+2*q)}, {pr(X+2*q)}, v[240:241], {pr(104+2*q)}')
    for q in Q:
        a(f'v_cvt_pk_bf16_f32 v{96+q}, v{X+2*q}, v{X+2*q+1}')
        if q and q % 2 == 0: a('v_add_u32 v7, 14336, v7')
        a(f'global_store_dword v7, v{96+q}, s[4:5] offset:{896*(q&1)}')
    a('s_waitcnt vmcnt(0)') if asmlib.STAMPS else None
    a.stamp_dump(5, 8)
    a.label('K6_END')
    a('s_endpgm')
    kernel('gemm4_kernel', (224, 1, 1), (512, 1, 1), LDSZ, 244, 40, a)

def gen_all(G):
    gen_k4(G); gen_k5(G); gen_k6(G)
```

```python
import sys, struct
sys.path.insert(0, 'work')
import asmlib
from asmlib import Asm
from layout import *

LOG2E = 1.4426950408889634
def f32(x): return '0x%08x' % struct.unpack('<I', struct.pack('<f', x))[0]

KERNELS = []

def kernel(name, grid, block, lds, vgpr, sgpr, a, keepv=False):
    import asmlib
    if asmlib.STAMPS:
        sgpr = 100
        if not keepv: vgpr = max(vgpr, 252)
    KERNELS.append((name, grid, block, lds, vgpr, sgpr, a.text()))

def srd(a, s, lo, hi, off, size):
    if off:
        a(f's_add_u32 s{s}, s{lo}, {off}')
        a(f's_addc_u32 s{s+1}, s{hi}, 0')
    else:
        a(f's_mov_b32 s{s}, s{lo}')
        a(f's_mov_b32 s{s+1}, s{hi}')
    a(f's_mov_b32 s{s+2}, {size}')
    a(f's_mov_b32 s{s+3}, 0x00020000')

def rnd_bf16(a, d, s):
    a(f'v_cvt_pk_bf16_f32 v{d}, v{s}, v{s}')
    a(f'v_lshlrev_b32 v{d}, 16, v{d}')

def unpack2(a, lo, hi, s):
    a(f'v_lshlrev_b32 v{lo}, 16, v{s}')
    a(f'v_and_b32 v{hi}, 0xffff0000, v{s}')

def ln_scalars(a, mean, var, mb, rinv, t):
    rnd_bf16(a, mb, mean)
    rnd_bf16(a, t, var)
    a(f'v_add_f32 v{t}, {f32(1e-5)}, v{t}')
    rnd_bf16(a, t, t)
    a(f'v_sqrt_f32 v{t}, v{t}')
    rnd_bf16(a, t, t)
    a(f'v_rcp_f32 v{rinv}, v{t}')

def gen_k1():
    a = Asm()
    pr = lambda r: f'v[{r}:{r+1}]'
    import os
    if int(os.environ.get('KGFIRST', '1')):
        a('s_cmp_ge_u32 s2, 512')
        a('s_cbranch_scc1 K1_END')
        a('s_add_u32 s2, s2, 64')
        a('s_and_b32 s2, s2, 511')
    a('s_cmp_lt_u32 s2, 64')
    a('s_cbranch_scc1 K1_LN')
    a('s_cmp_lt_u32 s2, 512')
    a('s_cbranch_scc1 K1_KGEN')
    a('s_endpgm')
    a.label('K1_LN')
    SC = 30208; RD = 32256; TR = 36864
    a.stamp(real=True); a.stamp()
    a('s_load_dwordx2 s[4:5], s[0:1], 0')
    a('s_load_dwordx2 s[8:9], s[0:1], 144')
    a('s_load_dwordx4 s[12:15], s[0:1], 112')
    a('v_lshrrev_b32 v1, 3, v0')
    a('v_and_b32 v2, 7, v0')
    a('s_and_b32 s22, s2, 7'); a('s_lshl_b32 s22, s22, 3'); a('s_lshr_b32 s23, s2, 3'); a('s_add_u32 s22, s22, s23')
    a('s_mul_i32 s6, s22, 28672')
    a('v_mul_u32_u24 v3, 896, v1')
    a('v_lshl_add_u32 v3, v2, 4, v3')
    a('v_add_u32 v3, s6, v3')
    a('v_lshlrev_b32 v10, 1, v0')
    a('s_lshl_b32 s7, s2, 7')
    a('v_mul_u32_u24 v11, 5376, v1')
    a('v_lshl_add_u32 v11, v2, 4, v11')
    a('v_add_u32 v11, s7, v11')
    a('s_waitcnt lgkmcnt(0)')
    for i in range(7):
        a(f'global_load_dwordx4 v[{16+4*i}:{19+4*i}], v3, s[4:5] offset:{128*i}')
    srd(a, 16, 12, 13, 0, 896)
    a('buffer_load_ushort v12, v10, s[16:19], 0 offen')
    a('buffer_load_ushort v13, v10, s[16:19], 0 offen offset:512')
    WM = 64
    a('s_cmp_ge_u32 s2, 42')
    a('s_cbranch_scc1 K1_NOW')
    for i in range(14):
        if i: a(f'v_add_u32 v11, {32*5376}, v11')
        a(f'global_load_dwordx4 v[{WM+4*i}:{WM+4*i+3}], v11, s[14:15]')
    a('s_waitcnt vmcnt(14)')
    a('s_branch K1_NOW2')
    a.label('K1_NOW')
    a('s_waitcnt vmcnt(0)')
    a.label('K1_NOW2')
    a.stamp()
    a('v_mov_b32 v9, 0x3f803f80')
    a('v_dot2_f32_bf16 v44, v16, v9, 0')
    a('v_dot2_f32_bf16 v45, v16, v16, 0')
    for k in range(1, 28):
        a(f'v_dot2_f32_bf16 v44, v{16+k}, v9, v44')
        a(f'v_dot2_f32_bf16 v45, v{16+k}, v{16+k}, v45')
    for r in (12, 13):
        a(f'v_lshlrev_b32 v{r}, 16, v{r}')
        a(f'v_mul_f32 v14, {f32(-LOG2E)}, v{r}')
        a('v_exp_f32 v14, v14')
        a('v_add_f32 v14, 1.0, v14')
        a('v_rcp_f32 v14, v14')
        a(f'v_mul_f32 v{r}, v{r}, v14')
        rnd_bf16(a, r, r)
    a('v_lshlrev_b32 v10, 2, v0')
    a(f'ds_write_b32 v10, v12 offset:{SC}')
    a(f'ds_write_b32 v10, v13 offset:{SC+1024}')
    for dp in ('quad_perm:[1,0,3,2]', 'quad_perm:[2,3,0,1]', 'row_half_mirror'):
        for r in (44, 45): a(f'v_add_f32_dpp v{r}, v{r}, v{r} {dp} row_mask:0xf bank_mask:0xf')
    a(f'v_mul_f32 v44, {f32(1.0/448)}, v44')
    a(f'v_mul_f32 v45, {f32(1.0/448)}, v45')
    a('v_fma_f32 v45, -v44, v44, v45')
    a('v_max_f32 v45, 0, v45')
    ln_scalars(a, 44, 45, 46, 48, 47)
    a('v_mov_b32 v49, v48'); a('v_mov_b32 v47, v46')
    a('v_mul_u32_u24 v4, 928, v1')
    a('v_lshrrev_b32 v5, 3, v1')
    a('v_lshl_add_u32 v4, v5, 7, v4')
    a('v_lshl_add_u32 v4, v2, 4, v4')
    for i in range(7):
        for jj in range(4):
            k = 4*i + jj; t = 52 + 2*jj
            unpack2(a, t, t+1, 16 + k)
            a(f'v_pk_add_f32 {pr(t)}, {pr(t)}, v[46:47] neg_lo:[0,1] neg_hi:[0,1]')
        for jj in range(4):
            k = 4*i + jj; t = 52 + 2*jj
            a(f'v_cvt_pk_bf16_f32 v{16+k}, v{t}, v{t+1}')
        for jj in range(4):
            k = 4*i + jj; t = 52 + 2*jj
            unpack2(a, t, t+1, 16 + k)
            a(f'v_pk_mul_f32 {pr(t)}, {pr(t)}, v[48:49]')
        for jj in range(4):
            k = 4*i + jj; t = 52 + 2*jj
            a(f'v_cvt_pk_bf16_f32 v{16+k}, v{t}, v{t+1}')
        a(f'ds_write_b128 v4, v[{16+4*i}:{19+4*i}] offset:{128*i}')
    a('v_and_b32 v5, 15, v0')
    a('v_bfe_u32 v6, v0, 4, 2')
    a('v_lshrrev_b32 v7, 6, v0')
    a('v_lshrrev_b32 v8, 2, v5')
    a('v_lshl_add_u32 v8, v6, 3, v8')
    a('v_mul_u32_u24 v8, 928, v8')
    a('v_lshl_add_u32 v8, v6, 7, v8')
    a('v_lshl_add_u32 v8, v7, 5, v8')
    a('v_and_b32 v9, 3, v5')
    a('v_lshl_add_u32 v8, v9, 3, v8')
    a('v_mul_u32_u24 v12, 7168, v7')
    a(f'v_add_u32 v12, {TR}, v12')
    a('v_lshl_add_u32 v13, v5, 6, v12')
    a('v_lshl_add_u32 v13, v6, 4, v13')
    a('v_and_b32 v14, 63, v0')
    a('v_lshl_add_u32 v12, v14, 4, v12')
    a('v_lshlrev_b32 v9, 4, v14')
    a('v_lshl_add_u32 v9, v7, 10, v9')
    a('v_add_u32 v9, s6, v9')
    a(f's_add_u32 s10, s8, {XNT}'); a('s_addc_u32 s11, s9, 0')
    a('v_lshlrev_b32 v10, 2, v1')
    a('s_waitcnt lgkmcnt(0)')
    a.stamp()
    a('s_barrier')
    a.stamp()
    for i in range(7):
        a(f'ds_read_b64_tr_b16 v[{16+4*i}:{17+4*i}], v8 offset:{128*i}')
        a(f'ds_read_b64_tr_b16 v[{18+4*i}:{19+4*i}], v8 offset:{128*i+4*928}')
    for i in range(7):
        a(f's_waitcnt lgkmcnt({min(15, 12-2*i+i)})')
        a(f'ds_write_b128 v13, v[{16+4*i}:{19+4*i}] offset:{1024*i}')
    a('s_waitcnt lgkmcnt(0)')
    for i in range(7): a(f'ds_read_b128 v[{16+4*i}:{19+4*i}], v12 offset:{1024*i}')
    for i in range(7):
        a(f's_waitcnt lgkmcnt({6-i})')
        if i: a('v_add_u32 v9, 4096, v9')
        a(f'global_store_dwordx4 v9, v[{16+4*i}:{19+4*i}], s[10:11]')
    a.stamp()
    a('s_cmp_ge_u32 s2, 42')
    a('s_cbranch_scc1 K1_LNEND')
    for i in range(14): a(f'ds_read_b32 v{44+i}, v10 offset:{SC+128*i}')
    for j in range(8): a(f'v_mov_b32 v{120+j}, 0')
    a('s_waitcnt vmcnt(7) lgkmcnt(0)')
    for i in range(14):
        for jj in range(4):
            unpack2(a, 58, 59, WM + 4*i + jj)
            a(f'v_fmac_f32 v{120+2*jj}, v{44+i}, v58')
            a(f'v_fmac_f32 v{121+2*jj}, v{44+i}, v59')
    for j in range(8): a(f'v_add_f32_dpp v{120+j}, v{120+j}, v{120+j} row_ror:8 row_mask:0xf bank_mask:0xf')
    for sw in ('v_permlane32_swap_b32', 'v_permlane16_swap_b32'):
        for j in range(8): a(f'v_mov_b32 v{44+j}, v{120+j}')
        for j in range(8): a(f'{sw} v{120+j}, v{44+j}')
        for j in range(8): a(f'v_add_f32 v{120+j}, v{120+j}, v{44+j}')
    a('v_lshlrev_b32 v4, 5, v2')
    a('v_lshl_add_u32 v4, v7, 8, v4')
    a('v_cmp_gt_u32 vcc, 8, v14')
    a('s_and_saveexec_b64 s[20:21], vcc')
    a(f'ds_write_b128 v4, v[120:123] offset:{RD}')
    a(f'ds_write_b128 v4, v[124:127] offset:{RD+16}')
    a('s_mov_b64 exec, s[20:21]')
    a('s_waitcnt lgkmcnt(0)')
    a('s_barrier')
    a('v_cmp_gt_u32 vcc, 64, v0')
    a('s_and_saveexec_b64 s[20:21], vcc')
    a('s_cbranch_execz K1_LNEND')
    a('v_lshlrev_b32 v4, 2, v0')
    for u in range(4): a(f'ds_read_b32 v{16+u}, v4 offset:{RD+256*u}')
    a('s_lshl_b32 s7, s2, 8')
    a('v_add_u32 v4, s7, v4')
    a('s_waitcnt lgkmcnt(0)')
    a('v_add_f32 v16, v16, v17'); a('v_add_f32 v18, v18, v19'); a('v_add_f32 v16, v16, v18')
    rnd_bf16(a, 16, 16)
    a(f'global_store_dword v4, v16, s[8:9] offset:{MOD}')
    a('v_add_f32 v17, 1.0, v16')
    rnd_bf16(a, 17, 17)
    a('s_cmp_lt_u32 s2, 7'); a('s_cbranch_scc1 K1_LNEND')
    a('s_cmp_lt_u32 s2, 14'); a('s_cbranch_scc1 K1_MOD_A')
    a('s_cmp_lt_u32 s2, 28'); a('s_cbranch_scc1 K1_LNEND')
    a('s_cmp_ge_u32 s2, 35'); a('s_cbranch_scc1 K1_LNEND')
    a(f'global_store_dword v4, v17, s[8:9] offset:{MOD+2*1792}')
    a('s_branch K1_LNEND')
    a.label('K1_MOD_A')
    a('v_add_u32 v4, 6*1792, v4')
    a(f'global_store_dword v4, v17, s[8:9] offset:{MOD}')
    a.label('K1_LNEND')
    if asmlib.STAMPS:
        a('s_waitcnt vmcnt(0)'); a.stamp(); a.stamp()
        a.stamp_dump(0, 8)
    a('s_endpgm')
    a.label('K1_KGEN')
    a.stamp(real=True); a.stamp()
    a('s_load_dwordx8 s[4:11], s[0:1], 8')
    a('s_load_dwordx4 s[12:15], s[0:1], 40')
    a('s_load_dwordx2 s[16:17], s[0:1], 56')
    a('s_load_dwordx2 s[18:19], s[0:1], 144')
    a('s_sub_u32 s3, s2, 64')
    a('s_lshl_b32 s20, s3, 9')
    a('v_lshl_add_u32 v1, v0, 1, s20')
    a('s_lshl_b32 s21, s3, 1')
    a('v_mov_b32 v2, s21')
    a('s_waitcnt lgkmcnt(0)')
    a.stamp()
    for i in range(6):
        a(f'global_load_ushort v{4+i}, v1, s[{4+2*i}:{5+2*i}]')
    a('global_load_ushort v10, v2, s[16:17]')
    a('v_lshlrev_b32 v112, 2, v0')
    for r in range(1, 16): a(f'v_xor_b32 v{112+r}, {r<<4}, v112')
    a('s_waitcnt vmcnt(0)')
    a.stamp()
    for i in range(7): a(f'v_lshlrev_b32 v{4+i}, 16, v{4+i}')
    a(f'v_mul_f32 v10, {f32(LOG2E)}, v10')
    a('v_exp_f32 v10, v10')
    rnd_bf16(a, 10, 10)
    a('v_mul_f32 v4, v10, v4')
    a('v_mul_f32 v5, v10, v5')
    a('v_mul_f32 v6, v10, v6')
    a('v_mul_f32 v7, v10, v7')
    a('v_mul_f32 v11, v9, v7')
    a('v_fma_f32 v12, v8, v6, -v11')
    a('v_mul_f32 v11, v9, v6')
    a('v_fma_f32 v13, v8, v7, v11')
    a('v_max_f32 v11, |v12|, |v13|')
    for sh in (1, 2, 4, 8):
        a(f'v_max_f32_dpp v11, v11, v11 row_shr:{sh} row_mask:0xf bank_mask:0xf')
    a('v_max_f32_dpp v11, v11, v11 row_bcast:15 row_mask:0xa bank_mask:0xf')
    a('v_max_f32_dpp v11, v11, v11 row_bcast:31 row_mask:0xc bank_mask:0xf')
    a('v_readlane_b32 s22, v11, 63')
    a('v_lshrrev_b32 v14, 6, v0')
    a('v_lshlrev_b32 v14, 2, v14')
    a('v_mov_b32 v15, s22')
    LK = 0; YB = 4608; XB = 20992
    a(f'ds_write_b32 v14, v15 offset:{LK+4352}')
    a(f'v_mul_f32 v4, {f32(LOG2E)}, v4')
    a(f'v_mul_f32 v5, {f32(1/(2*3.141592653589793))}, v5')
    def cexp(dr, di, mult):
        a(f'v_mul_f32 v16, {f32(mult)}, v4')
        a(f'v_mul_f32 v17, {f32(mult)}, v5')
        a('v_exp_f32 v16, v16')
        a('v_fract_f32 v17, v17')
        a(f'v_cos_f32 v{dr}, v17')
        a(f'v_sin_f32 v{di}, v17')
        a(f'v_mul_f32 v{dr}, v{dr}, v16')
        a(f'v_mul_f32 v{di}, v{di}, v16')
    def cmul(d, x, y):
        a(f'v_mul_f32 v16, v{x+1}, v{y+1}')
        a(f'v_mul_f32 v17, v{x+1}, v{y}')
        a(f'v_fma_f32 v{d}, v{x}, v{y}, -v16')
        a(f'v_fma_f32 v{d+1}, v{x}, v{y+1}, v17')
    E = lambda e: 20 + 2*(e-1)
    Y = lambda j: 34 + 2*(j-1)
    M = lambda m: 64 + 2*(m-1)
    T = lambda e: 96 + 2*e
    cexp(E(1), E(1)+1, 1.0); cexp(Y(1), Y(1)+1, 8.0); cexp(M(1), M(1)+1, 128.0)
    a('s_waitcnt lgkmcnt(0)')
    a('s_barrier')
    a.stamp()
    a('v_mov_b32 v14, 0')
    a(f'ds_read_b128 v[16:19], v14 offset:{LK+4352}')
    a('s_waitcnt lgkmcnt(0)')
    a('v_max3_f32 v16, v16, v17, v18')
    a('v_max_f32 v16, v16, v19')
    a('v_frexp_exp_i32_f32 v16, v16')
    a('v_mov_b32 v17, 100')
    a('v_med3_i32 v16, v16, -100, v17') if False else None
    a('v_max_i32 v16, -16, v16') if False else None
    a('v_min_i32 v16, v16, v17')
    a('v_sub_u32 v17, 0, v17')
    a('v_max_i32 v16, v16, v17')
    a('v_sub_u32 v17, 15, v16')
    a(f'v_ldexp_f32 v{T(0)}, v12, v17')
    a(f'v_ldexp_f32 v{T(0)+1}, v13, v17')
    a('v_add_u32 v17, -7, v16')
    a('v_ldexp_f32 v15, 1.0, v17')
    def chain(R, n):
        for j in range(2, n + 1):
            p = 1 << (j.bit_length() - 1)
            if p == j: cmul(R(j), R(j//2), R(j//2))
            else: cmul(R(j), R(p), R(j-p))
    def wr(row, re, im, neg=False, base=XB):
        a(f'v_cvt_pk_f16_f32 v18, v{re}, {"-" if neg else ""}v{im}')
        a(f'ds_write_b32 v{112+(row&15)}, v18 offset:{base+row*1024}')
    chain(Y, 15)
    a('v_mov_b32 v18, 0x3c00')
    a(f'ds_write_b32 v112, v18 offset:{YB}')
    for j in range(1, 16): wr(j, Y(j), Y(j)+1, neg=True, base=YB)
    chain(E, 7); chain(M, 16)
    for e in range(1, 8): cmul(T(e), T(0), E(e))
    TMP = 14
    def xrow(row, t, m):
        if m == 0: wr(row, T(t), T(t)+1)
        else:
            cmul(2, T(t), M(m)); wr(row, 2, 3)
    for i in range(2):
        for e in range(8): xrow(8*i + e, e, i)
    for i in range(2):
        for e in range(4): xrow(16 + 4*i + e, 2*e, 2 + i)
    for i in range(4):
        for e in range(2): xrow(24 + 2*i + e, 4*e, 4 + i)
    for i in range(8): xrow(32 + i, 0, 8 + i)
    xrow(40, 0, 16)
    a('v_cmp_eq_u32 vcc, 0, v0')
    a('s_and_saveexec_b64 s[24:25], vcc')
    a('s_lshl_b32 s26, s3, 2')
    a('v_mov_b32 v14, s26')
    a(f's_add_u32 s28, s18, {KSC}')
    a('s_addc_u32 s29, s19, 0')
    a('global_store_dword v14, v15, s[28:29]')
    a('s_mov_b64 exec, s[24:25]')
    a('v_lshrrev_b32 v1, 6, v0')
    a('v_and_b32 v2, 15, v0')
    a('v_bfe_u32 v3, v0, 4, 2')
    a('v_readfirstlane_b32 s23, v1')
    a('v_xor_b32 v4, v3, v2')
    a('s_waitcnt lgkmcnt(0)')
    a.stamp()
    a('s_barrier')
    a.stamp()
    a('s_cmp_eq_u32 s23, 3')
    a('s_cbranch_scc1 K1_KG_SKIP')
    a('v_lshlrev_b32 v5, 10, v2')
    for u in range(4):
        a(f'v_xor_b32 v{6+u}, {4*u}, v4')
        a(f'v_lshl_add_u32 v{6+u}, v{6+u}, 4, v5')
    a('s_lshl_b32 s24, s23, 14')
    a(f's_add_u32 s24, s24, {XB}')
    for u in range(4): a(f'v_add_u32 v{10+u}, s24, v{6+u}')
    for r in range(4): a(f'v_mov_b32 v{16+r}, 0')
    for s in range(16):
        a(f'ds_read_b128 v[{32+8*s}:{35+8*s}], v{10+(s&3)} offset:{256*(s>>2)}') if s < 8 else None
        a(f'ds_read_b128 v[{36+8*s}:{39+8*s}], v{6+(s&3)} offset:{YB+256*(s>>2)}') if s < 8 else None
    for s in range(16):
        b = 32 + 8*(s & 7)
        a(f's_waitcnt lgkmcnt({14 if s < 8 else 2*(15-s)})')
        a(f'v_mfma_f32_16x16x32_f16 v[16:19], v[{b}:{b+3}], v[{b+4}:{b+7}], v[16:19]')
        if s < 8:
            s2 = s + 8
            a(f'ds_read_b128 v[{b}:{b+3}], v{10+(s2&3)} offset:{256*(s2>>2)}')
            a(f'ds_read_b128 v[{b+4}:{b+7}], v{6+(s2&3)} offset:{YB+256*(s2>>2)}')
    a('v_lshlrev_b32 v20, 3, v2')
    a('s_cmp_eq_u32 s23, 0')
    a('s_cbranch_scc1 K1_KG_T0')
    a('s_cmp_eq_u32 s23, 1')
    a('s_cbranch_scc1 K1_KG_T1')
    a('v_lshl_add_u32 v21, v3, 9, v20')
    for r in range(4): a(f'v_add_u32 v{24+r}, {1024+128*r}, v21')
    a('s_branch K1_KG_W')
    a.label('K1_KG_T0')
    a('v_and_b32 v21, 1, v3')
    a('v_lshl_add_u32 v21, v21, 2, v20')
    a('v_lshrrev_b32 v22, 1, v3')
    a('v_lshl_add_u32 v21, v22, 7, v21')
    for r in range(4): a(f'v_add_u32 v{24+r}, {r}, v21')
    a('s_branch K1_KG_W')
    a.label('K1_KG_T1')
    a('v_lshl_add_u32 v21, v3, 7, v20')
    a('v_lshl_add_u32 v22, v3, 8, v20')
    a('v_cmp_gt_u32 vcc, 2, v3')
    for r in range(4):
        a(f'v_add_u32 v28, {256+2*r}, v21')
        a(f'v_add_u32 v29, {4*(r&1)+128*(r>>1)}, v22')
        a(f'v_cndmask_b32 v{24+r}, v29, v28, vcc')
    a.label('K1_KG_W')
    a('v_mov_b32 v28, 2056')
    for r in range(4):
        a(f'v_min_u32 v{24+r}, v{24+r}, v28')
        a(f'v_lshlrev_b32 v{24+r}, 1, v{24+r}')
        a(f'v_mul_f32 v{16+r}, {f32(2.0**-8)}, v{16+r}')
        a(f'v_cvt_f16_f32 v{16+r}, v{16+r}')
        a(f'ds_write_b16 v{24+r}, v{16+r} offset:{LK}')
    a.label('K1_KG_SKIP')
    a('v_lshlrev_b32 v1, 3, v0')
    for p in range(4):
        a(f'v_add_u32 v2, {2*p}, v1')
        a(f'v_add_u32 v3, {2*p+1}, v1')
        a('v_cvt_f32_u32 v2, v2')
        a('v_cvt_f32_u32 v3, v3')
        a('v_cvt_pk_bf16_f32 v4, v2, v3')
        unpack2(a, 2, 3, 4)
        a('v_cvt_u32_f32 v2, v2')
        a('v_cvt_u32_f32 v3, v3')
        a(f'v_lshlrev_b32 v{32+2*p}, 1, v2')
        a(f'v_lshlrev_b32 v{33+2*p}, 1, v3')
    a('s_lshl_b32 s24, s3, 12')
    a('v_lshl_add_u32 v5, v0, 4, s24')
    a(f's_add_u32 s30, s18, {KP}')
    a('s_addc_u32 s31, s19, 0')
    a('s_waitcnt lgkmcnt(0)')
    a.stamp()
    a('s_barrier')
    for p in range(4):
        a(f'ds_read_u16 v{40+p}, v{32+2*p} offset:{LK}')
        a(f'ds_read_u16 v{44+p}, v{33+2*p} offset:{LK}')
    a('s_waitcnt lgkmcnt(0)')
    for p in range(4): a(f'v_lshl_or_b32 v{40+p}, v{44+p}, 16, v{40+p}')
    a('global_store_dwordx4 v5, v[40:43], s[30:31]')
    a('s_waitcnt vmcnt(0)') if asmlib.STAMPS else None
    a.stamp_dump(0, 18)
    a.label('K1_END')
    a('s_endpgm')
    kernel('prep_kernel', (512, 1, 1), (256, 1, 1), 70144, 128, 32, a)

HEADER = open('adaLN_cond__ssm_conv_s4__mixer_s_mlp__prompt.s.ref').read().split('; Override launch')[0]

def emit(path):
    out = [HEADER.rstrip('\n')]
    for (name, grid, block, lds, vgpr, sgpr, text) in KERNELS:
        out.append(f'; @launch kernel={name} grid=({grid[0]},{grid[1]},{grid[2]}) block=({block[0]},{block[1]},{block[2]}) lds={lds}')
    out.append('.amdgcn_target "amdgcn-amd-amdhsa--gfx950"')
    out.append('.text')
    for (name, grid, block, lds, vgpr, sgpr, text) in KERNELS:
        out += [f'.globl {name}', '.p2align 8', f'.type {name},@function', f'{name}:', text]
    out.append('.section .rodata,"a"')
    for (name, grid, block, lds, vgpr, sgpr, text) in KERNELS:
        acc = (vgpr + 3) // 4 * 4
        out += ['.p2align 6', f'.amdhsa_kernel {name}', f'  .amdhsa_next_free_vgpr {vgpr}', f'  .amdhsa_next_free_sgpr {sgpr}',
                f'  .amdhsa_accum_offset {acc}', '  .amdhsa_group_segment_fixed_size 0', '  .amdhsa_kernarg_size 152',
                '  .amdhsa_user_sgpr_count 2', '  .amdhsa_user_sgpr_kernarg_segment_ptr 1', '  .amdhsa_system_sgpr_workgroup_id_x 1',
                '.end_amdhsa_kernel']
    open(path, 'w').write('\n'.join(out) + '\n')

if __name__ == '__main__':
    gen_k1()
    try:
        import gen2
        gen2.gen_all(sys.modules[__name__])
    except ImportError:
        pass
    emit('adaLN_cond__ssm_conv_s4__mixer_s_mlp__prompt.s')
```

```python
import sys, struct
sys.path.insert(0, 'work')
import asmlib
from asmlib import Asm
from layout import *

LOG2E = 1.4426950408889634
def f32(x): return '0x%08x' % struct.unpack('<I', struct.pack('<f', x))[0]

KERNELS = []

def kernel(name, grid, block, lds, vgpr, sgpr, a, keepv=False):
    import asmlib
    if asmlib.STAMPS:
        sgpr = 100
        if not keepv: vgpr = max(vgpr, 252)
    KERNELS.append((name, grid, block, lds, vgpr, sgpr, a.text()))

def srd(a, s, lo, hi, off, size):
    if off:
        a(f's_add_u32 s{s}, s{lo}, {off}')
        a(f's_addc_u32 s{s+1}, s{hi}, 0')
    else:
        a(f's_mov_b32 s{s}, s{lo}')
        a(f's_mov_b32 s{s+1}, s{hi}')
    a(f's_mov_b32 s{s+2}, {size}')
    a(f's_mov_b32 s{s+3}, 0x00020000')

def rnd_bf16(a, d, s):
    a(f'v_cvt_pk_bf16_f32 v{d}, v{s}, v{s}')
    a(f'v_lshlrev_b32 v{d}, 16, v{d}')

def unpack2(a, lo, hi, s):
    a(f'v_lshlrev_b32 v{lo}, 16, v{s}')
    a(f'v_and_b32 v{hi}, 0xffff0000, v{s}')

def ln_scalars(a, mean, var, mb, rinv, t):
    rnd_bf16(a, mb, mean)
    rnd_bf16(a, t, var)
    a(f'v_add_f32 v{t}, {f32(1e-5)}, v{t}')
    rnd_bf16(a, t, t)
    a(f'v_sqrt_f32 v{t}, v{t}')
    rnd_bf16(a, t, t)
    a(f'v_rcp_f32 v{rinv}, v{t}')

def gen_k1():
    a = Asm()
    pr = lambda r: f'v[{r}:{r+1}]'
    import os
    if int(os.environ.get('KGFIRST', '1')):
        a('s_cmp_ge_u32 s2, 512')
        a('s_cbranch_scc1 K1_END')
        a('s_add_u32 s2, s2, 64')
        a('s_and_b32 s2, s2, 511')
    a('s_cmp_lt_u32 s2, 64')
    a('s_cbranch_scc1 K1_LN')
    a('s_cmp_lt_u32 s2, 512')
    a('s_cbranch_scc1 K1_KGEN')
    a('s_endpgm')
    a.label('K1_LN')
    SC = 30208; RD = 32256; TR = 36864
    a.stamp(real=True); a.stamp()
    a('s_load_dwordx2 s[4:5], s[0:1], 0')
    a('s_load_dwordx2 s[8:9], s[0:1], 144')
    a('s_load_dwordx4 s[12:15], s[0:1], 112')
    a('v_lshrrev_b32 v1, 3, v0')
    a('v_and_b32 v2, 7, v0')
    a('s_and_b32 s22, s2, 7'); a('s_lshl_b32 s22, s22, 3'); a('s_lshr_b32 s23, s2, 3'); a('s_add_u32 s22, s22, s23')
    a('s_mul_i32 s6, s22, 28672')
    a('v_mul_u32_u24 v3, 896, v1')
    a('v_lshl_add_u32 v3, v2, 4, v3')
    a('v_add_u32 v3, s6, v3')
    a('v_lshlrev_b32 v10, 1, v0')
    a('s_lshl_b32 s7, s2, 7')
    a('v_mul_u32_u24 v11, 5376, v1')
    a('v_lshl_add_u32 v11, v2, 4, v11')
    a('v_add_u32 v11, s7, v11')
    a('s_waitcnt lgkmcnt(0)')
    for i in range(7):
        a(f'global_load_dwordx4 v[{16+4*i}:{19+4*i}], v3, s[4:5] offset:{128*i}')
    srd(a, 16, 12, 13, 0, 896)
    a('buffer_load_ushort v12, v10, s[16:19], 0 offen')
    a('buffer_load_ushort v13, v10, s[16:19], 0 offen offset:512')
    WM = 64
    a('s_cmp_ge_u32 s2, 42')
    a('s_cbranch_scc1 K1_NOW')
    for i in range(14):
        if i: a(f'v_add_u32 v11, {32*5376}, v11')
        a(f'global_load_dwordx4 v[{WM+4*i}:{WM+4*i+3}], v11, s[14:15]')
    a('s_waitcnt vmcnt(14)')
    a('s_branch K1_NOW2')
    a.label('K1_NOW')
    a('s_waitcnt vmcnt(0)')
    a.label('K1_NOW2')
    a.stamp()
    a('v_mov_b32 v9, 0x3f803f80')
    a('v_dot2_f32_bf16 v44, v16, v9, 0')
    a('v_dot2_f32_bf16 v45, v16, v16, 0')
    for k in range(1, 28):
        a(f'v_dot2_f32_bf16 v44, v{16+k}, v9, v44')
        a(f'v_dot2_f32_bf16 v45, v{16+k}, v{16+k}, v45')
    for r in (12, 13):
        a(f'v_lshlrev_b32 v{r}, 16, v{r}')
        a(f'v_mul_f32 v14, {f32(-LOG2E)}, v{r}')
        a('v_exp_f32 v14, v14')
        a('v_add_f32 v14, 1.0, v14')
        a('v_rcp_f32 v14, v14')
        a(f'v_mul_f32 v{r}, v{r}, v14')
        rnd_bf16(a, r, r)
    a('v_lshlrev_b32 v10, 2, v0')
    a(f'ds_write_b32 v10, v12 offset:{SC}')
    a(f'ds_write_b32 v10, v13 offset:{SC+1024}')
    for dp in ('quad_perm:[1,0,3,2]', 'quad_perm:[2,3,0,1]', 'row_half_mirror'):
        for r in (44, 45): a(f'v_add_f32_dpp v{r}, v{r}, v{r} {dp} row_mask:0xf bank_mask:0xf')
    a(f'v_mul_f32 v44, {f32(1.0/448)}, v44')
    a(f'v_mul_f32 v45, {f32(1.0/448)}, v45')
    a('v_fma_f32 v45, -v44, v44, v45')
    a('v_max_f32 v45, 0, v45')
    ln_scalars(a, 44, 45, 46, 48, 47)
    a('v_mov_b32 v49, v48'); a('v_mov_b32 v47, v46')
    a('v_mul_u32_u24 v4, 928, v1')
    a('v_lshrrev_b32 v5, 3, v1')
    a('v_lshl_add_u32 v4, v5, 7, v4')
    a('v_lshl_add_u32 v4, v2, 4, v4')
    for i in range(7):
        for jj in range(4):
            k = 4*i + jj; t = 52 + 2*jj
            unpack2(a, t, t+1, 16 + k)
            a(f'v_pk_add_f32 {pr(t)}, {pr(t)}, v[46:47] neg_lo:[0,1] neg_hi:[0,1]')
        for jj in range(4):
            k = 4*i + jj; t = 52 + 2*jj
            a(f'v_cvt_pk_bf16_f32 v{16+k}, v{t}, v{t+1}')
        for jj in range(4):
            k = 4*i + jj; t = 52 + 2*jj
            unpack2(a, t, t+1, 16 + k)
            a(f'v_pk_mul_f32 {pr(t)}, {pr(t)}, v[48:49]')
        for jj in range(4):
            k = 4*i + jj; t = 52 + 2*jj
            a(f'v_cvt_pk_bf16_f32 v{16+k}, v{t}, v{t+1}')
        a(f'ds_write_b128 v4, v[{16+4*i}:{19+4*i}] offset:{128*i}')
    a('v_and_b32 v5, 15, v0')
    a('v_bfe_u32 v6, v0, 4, 2')
    a('v_lshrrev_b32 v7, 6, v0')
    a('v_lshrrev_b32 v8, 2, v5')
    a('v_lshl_add_u32 v8, v6, 3, v8')
    a('v_mul_u32_u24 v8, 928, v8')
    a('v_lshl_add_u32 v8, v6, 7, v8')
    a('v_lshl_add_u32 v8, v7, 5, v8')
    a('v_and_b32 v9, 3, v5')
    a('v_lshl_add_u32 v8, v9, 3, v8')
    a('v_mul_u32_u24 v12, 7168, v7')
    a(f'v_add_u32 v12, {TR}, v12')
    a('v_lshl_add_u32 v13, v5, 6, v12')
    a('v_lshl_add_u32 v13, v6, 4, v13')
    a('v_and_b32 v14, 63, v0')
    a('v_lshl_add_u32 v12, v14, 4, v12')
    a('v_lshlrev_b32 v9, 4, v14')
    a('v_lshl_add_u32 v9, v7, 10, v9')
    a('v_add_u32 v9, s6, v9')
    a(f's_add_u32 s10, s8, {XNT}'); a('s_addc_u32 s11, s9, 0')
    a('v_lshlrev_b32 v10, 2, v1')
    a('s_waitcnt lgkmcnt(0)')
    a.stamp()
    a('s_barrier')
    a.stamp()
    for i in range(7):
        a(f'ds_read_b64_tr_b16 v[{16+4*i}:{17+4*i}], v8 offset:{128*i}')
        a(f'ds_read_b64_tr_b16 v[{18+4*i}:{19+4*i}], v8 offset:{128*i+4*928}')
    for i in range(7):
        a(f's_waitcnt lgkmcnt({min(15, 12-2*i+i)})')
        a(f'ds_write_b128 v13, v[{16+4*i}:{19+4*i}] offset:{1024*i}')
    a('s_waitcnt lgkmcnt(0)')
    for i in range(7): a(f'ds_read_b128 v[{16+4*i}:{19+4*i}], v12 offset:{1024*i}')
    for i in range(7):
        a(f's_waitcnt lgkmcnt({6-i})')
        if i: a('v_add_u32 v9, 4096, v9')
        a(f'global_store_dwordx4 v9, v[{16+4*i}:{19+4*i}], s[10:11]')
    a.stamp()
    a('s_cmp_ge_u32 s2, 42')
    a('s_cbranch_scc1 K1_LNEND')
    for i in range(14): a(f'ds_read_b32 v{44+i}, v10 offset:{SC+128*i}')
    for j in range(8): a(f'v_mov_b32 v{120+j}, 0')
    a('s_waitcnt vmcnt(7) lgkmcnt(0)')
    for i in range(14):
        for jj in range(4):
            unpack2(a, 58, 59, WM + 4*i + jj)
            a(f'v_fmac_f32 v{120+2*jj}, v{44+i}, v58')
            a(f'v_fmac_f32 v{121+2*jj}, v{44+i}, v59')
    for j in range(8): a(f'v_add_f32_dpp v{120+j}, v{120+j}, v{120+j} row_ror:8 row_mask:0xf bank_mask:0xf')
    for sw in ('v_permlane32_swap_b32', 'v_permlane16_swap_b32'):
        for j in range(8): a(f'v_mov_b32 v{44+j}, v{120+j}')
        for j in range(8): a(f'{sw} v{120+j}, v{44+j}')
        for j in range(8): a(f'v_add_f32 v{120+j}, v{120+j}, v{44+j}')
    a('v_lshlrev_b32 v4, 5, v2')
    a('v_lshl_add_u32 v4, v7, 8, v4')
    a('v_cmp_gt_u32 vcc, 8, v14')
    a('s_and_saveexec_b64 s[20:21], vcc')
    a(f'ds_write_b128 v4, v[120:123] offset:{RD}')
    a(f'ds_write_b128 v4, v[124:127] offset:{RD+16}')
    a('s_mov_b64 exec, s[20:21]')
    a('s_waitcnt lgkmcnt(0)')
    a('s_barrier')
    a('v_cmp_gt_u32 vcc, 64, v0')
    a('s_and_saveexec_b64 s[20:21], vcc')
    a('s_cbranch_execz K1_LNEND')
    a('v_lshlrev_b32 v4, 2, v0')
    for u in range(4): a(f'ds_read_b32 v{16+u}, v4 offset:{RD+256*u}')
    a('s_lshl_b32 s7, s2, 8')
    a('v_add_u32 v4, s7, v4')
    a('s_waitcnt lgkmcnt(0)')
    a('v_add_f32 v16, v16, v17'); a('v_add_f32 v18, v18, v19'); a('v_add_f32 v16, v16, v18')
    rnd_bf16(a, 16, 16)
    a(f'global_store_dword v4, v16, s[8:9] offset:{MOD}')
    a('v_add_f32 v17, 1.0, v16')
    rnd_bf16(a, 17, 17)
    a('s_cmp_lt_u32 s2, 7'); a('s_cbranch_scc1 K1_LNEND')
    a('s_cmp_lt_u32 s2, 14'); a('s_cbranch_scc1 K1_MOD_A')
    a('s_cmp_lt_u32 s2, 28'); a('s_cbranch_scc1 K1_LNEND')
    a('s_cmp_ge_u32 s2, 35'); a('s_cbranch_scc1 K1_LNEND')
    a(f'global_store_dword v4, v17, s[8:9] offset:{MOD+2*1792}')
    a('s_branch K1_LNEND')
    a.label('K1_MOD_A')
    a('v_add_u32 v4, 6*1792, v4')
    a(f'global_store_dword v4, v17, s[8:9] offset:{MOD}')
    a.label('K1_LNEND')
    if asmlib.STAMPS:
        a('s_waitcnt vmcnt(0)'); a.stamp(); a.stamp()
        a.stamp_dump(0, 8)
    a('s_endpgm')
    a.label('K1_KGEN')
    a.stamp(real=True); a.stamp()
    a('s_load_dwordx8 s[4:11], s[0:1], 8')
    a('s_load_dwordx4 s[12:15], s[0:1], 40')
    a('s_load_dwordx2 s[16:17], s[0:1], 56')
    a('s_load_dwordx2 s[18:19], s[0:1], 144')
    a('s_sub_u32 s3, s2, 64')
    a('s_lshl_b32 s20, s3, 9')
    a('v_lshl_add_u32 v1, v0, 1, s20')
    a('s_lshl_b32 s21, s3, 1')
    a('v_mov_b32 v2, s21')
    a('s_waitcnt lgkmcnt(0)')
    a.stamp()
    for i in range(6):
        a(f'global_load_ushort v{4+i}, v1, s[{4+2*i}:{5+2*i}]')
    a('global_load_ushort v10, v2, s[16:17]')
    a('v_lshlrev_b32 v112, 2, v0')
    for r in range(1, 16): a(f'v_xor_b32 v{112+r}, {r<<4}, v112')
    a('s_waitcnt vmcnt(0)')
    a.stamp()
    for i in range(7): a(f'v_lshlrev_b32 v{4+i}, 16, v{4+i}')
    a(f'v_mul_f32 v10, {f32(LOG2E)}, v10')
    a('v_exp_f32 v10, v10')
    rnd_bf16(a, 10, 10)
    a('v_mul_f32 v4, v10, v4')
    a('v_mul_f32 v5, v10, v5')
    a('v_mul_f32 v6, v10, v6')
    a('v_mul_f32 v7, v10, v7')
    a('v_mul_f32 v11, v9, v7')
    a('v_fma_f32 v12, v8, v6, -v11')
    a('v_mul_f32 v11, v9, v6')
    a('v_fma_f32 v13, v8, v7, v11')
    a('v_max_f32 v11, |v12|, |v13|')
    for sh in (1, 2, 4, 8):
        a(f'v_max_f32_dpp v11, v11, v11 row_shr:{sh} row_mask:0xf bank_mask:0xf')
    a('v_max_f32_dpp v11, v11, v11 row_bcast:15 row_mask:0xa bank_mask:0xf')
    a('v_max_f32_dpp v11, v11, v11 row_bcast:31 row_mask:0xc bank_mask:0xf')
    a('v_readlane_b32 s22, v11, 63')
    a('v_lshrrev_b32 v14, 6, v0')
    a('v_lshlrev_b32 v14, 2, v14')
    a('v_mov_b32 v15, s22')
    LK = 0; YB = 4608; XB = 20992
    a(f'ds_write_b32 v14, v15 offset:{LK+4352}')
    a(f'v_mul_f32 v4, {f32(LOG2E)}, v4')
    a(f'v_mul_f32 v5, {f32(1/(2*3.141592653589793))}, v5')
    def cexp(dr, di, mult):
        a(f'v_mul_f32 v16, {f32(mult)}, v4')
        a(f'v_mul_f32 v17, {f32(mult)}, v5')
        a('v_exp_f32 v16, v16')
        a('v_fract_f32 v17, v17')
        a(f'v_cos_f32 v{dr}, v17')
        a(f'v_sin_f32 v{di}, v17')
        a(f'v_mul_f32 v{dr}, v{dr}, v16')
        a(f'v_mul_f32 v{di}, v{di}, v16')
    def cmul(d, x, y):
        a(f'v_mul_f32 v16, v{x+1}, v{y+1}')
        a(f'v_mul_f32 v17, v{x+1}, v{y}')
        a(f'v_fma_f32 v{d}, v{x}, v{y}, -v16')
        a(f'v_fma_f32 v{d+1}, v{x}, v{y+1}, v17')
    E = lambda e: 20 + 2*(e-1)
    Y = lambda j: 34 + 2*(j-1)
    M = lambda m: 64 + 2*(m-1)
    T = lambda e: 96 + 2*e
    cexp(E(1), E(1)+1, 1.0); cexp(Y(1), Y(1)+1, 8.0); cexp(M(1), M(1)+1, 128.0)
    a('s_waitcnt lgkmcnt(0)')
    a('s_barrier')
    a.stamp()
    a('v_mov_b32 v14, 0')
    a(f'ds_read_b128 v[16:19], v14 offset:{LK+4352}')
    a('s_waitcnt lgkmcnt(0)')
    a('v_max3_f32 v16, v16, v17, v18')
    a('v_max_f32 v16, v16, v19')
    a('v_frexp_exp_i32_f32 v16, v16')
    a('v_mov_b32 v17, 100')
    a('v_med3_i32 v16, v16, -100, v17') if False else None
    a('v_max_i32 v16, -16, v16') if False else None
    a('v_min_i32 v16, v16, v17')
    a('v_sub_u32 v17, 0, v17')
    a('v_max_i32 v16, v16, v17')
    a('v_sub_u32 v17, 15, v16')
    a(f'v_ldexp_f32 v{T(0)}, v12, v17')
    a(f'v_ldexp_f32 v{T(0)+1}, v13, v17')
    a('v_add_u32 v17, -7, v16')
    a('v_ldexp_f32 v15, 1.0, v17')
    def chain(R, n):
        for j in range(2, n + 1):
            p = 1 << (j.bit_length() - 1)
            if p == j: cmul(R(j), R(j//2), R(j//2))
            else: cmul(R(j), R(p), R(j-p))
    def wr(row, re, im, neg=False, base=XB):
        a(f'v_cvt_pk_f16_f32 v18, v{re}, {"-" if neg else ""}v{im}')
        a(f'ds_write_b32 v{112+(row&15)}, v18 offset:{base+row*1024}')
    chain(Y, 15)
    a('v_mov_b32 v18, 0x3c00')
    a(f'ds_write_b32 v112, v18 offset:{YB}')
    for j in range(1, 16): wr(j, Y(j), Y(j)+1, neg=True, base=YB)
    chain(E, 7); chain(M, 16)
    for e in range(1, 8): cmul(T(e), T(0), E(e))
    TMP = 14
    def xrow(row, t, m):
        if m == 0: wr(row, T(t), T(t)+1)
        else:
            cmul(2, T(t), M(m)); wr(row, 2, 3)
    for i in range(2):
        for e in range(8): xrow(8*i + e, e, i)
    for i in range(2):
        for e in range(4): xrow(16 + 4*i + e, 2*e, 2 + i)
    for i in range(4):
        for e in range(2): xrow(24 + 2*i + e, 4*e, 4 + i)
    for i in range(8): xrow(32 + i, 0, 8 + i)
    xrow(40, 0, 16)
    a('v_cmp_eq_u32 vcc, 0, v0')
    a('s_and_saveexec_b64 s[24:25], vcc')
    a('s_lshl_b32 s26, s3, 2')
    a('v_mov_b32 v14, s26')
    a(f's_add_u32 s28, s18, {KSC}')
    a('s_addc_u32 s29, s19, 0')
    a('global_store_dword v14, v15, s[28:29]')
    a('s_mov_b64 exec, s[24:25]')
    a('v_lshrrev_b32 v1, 6, v0')
    a('v_and_b32 v2, 15, v0')
    a('v_bfe_u32 v3, v0, 4, 2')
    a('v_readfirstlane_b32 s23, v1')
    a('v_xor_b32 v4, v3, v2')
    a('s_waitcnt lgkmcnt(0)')
    a.stamp()
    a('s_barrier')
    a.stamp()
    a('s_cmp_eq_u32 s23, 3')
    a('s_cbranch_scc1 K1_KG_SKIP')
    a('v_lshlrev_b32 v5, 10, v2')
    for u in range(4):
        a(f'v_xor_b32 v{6+u}, {4*u}, v4')
        a(f'v_lshl_add_u32 v{6+u}, v{6+u}, 4, v5')
    a('s_lshl_b32 s24, s23, 14')
    a(f's_add_u32 s24, s24, {XB}')
    for u in range(4): a(f'v_add_u32 v{10+u}, s24, v{6+u}')
    for r in range(4): a(f'v_mov_b32 v{16+r}, 0')
    for s in range(16):
        a(f'ds_read_b128 v[{32+8*s}:{35+8*s}], v{10+(s&3)} offset:{256*(s>>2)}') if s < 8 else None
        a(f'ds_read_b128 v[{36+8*s}:{39+8*s}], v{6+(s&3)} offset:{YB+256*(s>>2)}') if s < 8 else None
    for s in range(16):
        b = 32 + 8*(s & 7)
        a(f's_waitcnt lgkmcnt({14 if s < 8 else 2*(15-s)})')
        a(f'v_mfma_f32_16x16x32_f16 v[16:19], v[{b}:{b+3}], v[{b+4}:{b+7}], v[16:19]')
        if s < 8:
            s2 = s + 8
            a(f'ds_read_b128 v[{b}:{b+3}], v{10+(s2&3)} offset:{256*(s2>>2)}')
            a(f'ds_read_b128 v[{b+4}:{b+7}], v{6+(s2&3)} offset:{YB+256*(s2>>2)}')
    a('v_lshlrev_b32 v20, 3, v2')
    a('s_cmp_eq_u32 s23, 0')
    a('s_cbranch_scc1 K1_KG_T0')
    a('s_cmp_eq_u32 s23, 1')
    a('s_cbranch_scc1 K1_KG_T1')
    a('v_lshl_add_u32 v21, v3, 9, v20')
    for r in range(4): a(f'v_add_u32 v{24+r}, {1024+128*r}, v21')
    a('s_branch K1_KG_W')
    a.label('K1_KG_T0')
    a('v_and_b32 v21, 1, v3')
    a('v_lshl_add_u32 v21, v21, 2, v20')
    a('v_lshrrev_b32 v22, 1, v3')
    a('v_lshl_add_u32 v21, v22, 7, v21')
    for r in range(4): a(f'v_add_u32 v{24+r}, {r}, v21')
    a('s_branch K1_KG_W')
    a.label('K1_KG_T1')
    a('v_lshl_add_u32 v21, v3, 7, v20')
    a('v_lshl_add_u32 v22, v3, 8, v20')
    a('v_cmp_gt_u32 vcc, 2, v3')
    for r in range(4):
        a(f'v_add_u32 v28, {256+2*r}, v21')
        a(f'v_add_u32 v29, {4*(r&1)+128*(r>>1)}, v22')
        a(f'v_cndmask_b32 v{24+r}, v29, v28, vcc')
    a.label('K1_KG_W')
    a('v_mov_b32 v28, 2056')
    for r in range(4):
        a(f'v_min_u32 v{24+r}, v{24+r}, v28')
        a(f'v_lshlrev_b32 v{24+r}, 1, v{24+r}')
        a(f'v_mul_f32 v{16+r}, {f32(2.0**-8)}, v{16+r}')
        a(f'v_cvt_f16_f32 v{16+r}, v{16+r}')
        a(f'ds_write_b16 v{24+r}, v{16+r} offset:{LK}')
    a.label('K1_KG_SKIP')
    a('v_lshlrev_b32 v1, 3, v0')
    for p in range(4):
        a(f'v_add_u32 v2, {2*p}, v1')
        a(f'v_add_u32 v3, {2*p+1}, v1')
        a('v_cvt_f32_u32 v2, v2')
        a('v_cvt_f32_u32 v3, v3')
        a('v_cvt_pk_bf16_f32 v4, v2, v3')
        unpack2(a, 2, 3, 4)
        a('v_cvt_u32_f32 v2, v2')
        a('v_cvt_u32_f32 v3, v3')
        a(f'v_lshlrev_b32 v{32+2*p}, 1, v2')
        a(f'v_lshlrev_b32 v{33+2*p}, 1, v3')
    a('s_lshl_b32 s24, s3, 12')
    a('v_lshl_add_u32 v5, v0, 4, s24')
    a(f's_add_u32 s30, s18, {KP}')
    a('s_addc_u32 s31, s19, 0')
    a('s_waitcnt lgkmcnt(0)')
    a.stamp()
    a('s_barrier')
    for p in range(4):
        a(f'ds_read_u16 v{40+p}, v{32+2*p} offset:{LK}')
        a(f'ds_read_u16 v{44+p}, v{33+2*p} offset:{LK}')
    a('s_waitcnt lgkmcnt(0)')
    for p in range(4): a(f'v_lshl_or_b32 v{40+p}, v{44+p}, 16, v{40+p}')
    a('global_store_dwordx4 v5, v[40:43], s[30:31]')
    a('s_waitcnt vmcnt(0)') if asmlib.STAMPS else None
    a.stamp_dump(0, 18)
    a.label('K1_END')
    a('s_endpgm')
    kernel('prep_kernel', (512, 1, 1), (256, 1, 1), 70144, 128, 32, a)

HEADER = open('adaLN_cond__ssm_conv_s4__mixer_s_mlp__prompt.s.ref').read().split('; Override launch')[0]

def emit(path):
    out = [HEADER.rstrip('\n')]
    for (name, grid, block, lds, vgpr, sgpr, text) in KERNELS:
        out.append(f'; @launch kernel={name} grid=({grid[0]},{grid[1]},{grid[2]}) block=({block[0]},{block[1]},{block[2]}) lds={lds}')
    out += ['; Pipeline (generated by a python script, hand-designed):',
            ';  prep_kernel    : adaLN mod vector, LN1 (+transpose to channel-major), S4 kernel K via exp(z(u+v))=exp(zu)exp(zv) as an fp16 MFMA product',
            ';  conv_kernel    : causal conv as Toeplitz x plain fp16 MFMA per channel pair (+gate/skip), and weight re-packing into MFMA fragment order',
            ';  ln_gemm1_kernel: x1, LN2+modulation, GEMM1 with LN3 folded into the epilogue, GELU',
            ';  gemm2_kernel   : token-shift GEMM2 + residual, per-row partial statistics',
            ';  gemm3_kernel   : GEMM3 (LN4 folded) + GELU, LDS-DMA loader waves',
            ';  gemm4_kernel   : GEMM4 + residuals + gate, LDS-DMA loader waves']
    out.append('.amdgcn_target "amdgcn-amd-amdhsa--gfx950"')
    out.append('.text')
    for (name, grid, block, lds, vgpr, sgpr, text) in KERNELS:
        out += [f'.globl {name}', '.p2align 8', f'.type {name},@function', f'{name}:', text]
    out.append('.section .rodata,"a"')
    for (name, grid, block, lds, vgpr, sgpr, text) in KERNELS:
        acc = (vgpr + 3) // 4 * 4
        out += ['.p2align 6', f'.amdhsa_kernel {name}', f'  .amdhsa_next_free_vgpr {vgpr}', f'  .amdhsa_next_free_sgpr {sgpr}',
                f'  .amdhsa_accum_offset {acc}', '  .amdhsa_group_segment_fixed_size 0', '  .amdhsa_kernarg_size 152',
                '  .amdhsa_user_sgpr_count 2', '  .amdhsa_user_sgpr_kernarg_segment_ptr 1', '  .amdhsa_system_sgpr_workgroup_id_x 1',
                '.end_amdhsa_kernel']
    open(path, 'w').write('\n'.join(out) + '\n')

if __name__ == '__main__':
    gen_k1()
    try:
        import gen2
        gen2.gen_all(sys.modules[__name__])
    except ImportError:
        pass
    emit('adaLN_cond__ssm_conv_s4__mixer_s_mlp__prompt.s')
```

```python
import asmlib, os
from asmlib import Asm
from layout import *

def gen_k2(G):
    f32, srd, rnd_bf16, unpack2, kernel = G.f32, G.srd, G.rnd_bf16, G.unpack2, G.kernel
    a = Asm()
    a('s_cmp_lt_u32 s2, 224')
    a('s_cbranch_scc1 K2_CONV')
    a('s_cmp_lt_u32 s2, 294')
    a('s_cbranch_scc1 K2_PACK')
    a('s_endpgm')
    a.label('K2_CONV')
    pr = lambda r: f'v[{r}:{r+1}]'
    TCS = 34816; KB = 69632; RED = 17408
    osig = [0, 4, 8, 12, 2, 6, 10, 14]
    tbase = lambda sg: sg * 4352 + osig[sg] * 16
    a.stamp(real=True); a.stamp()
    a('s_load_dwordx2 s[4:5], s[0:1], 144')
    a('s_load_dwordx2 s[6:7], s[0:1], 64')
    a('s_lshl_b32 s3, s2, 3')
    a('s_lshl_b32 s16, s2, 2')
    a('v_lshrrev_b32 v1, 2, v0')
    a('v_mul_u32_u24 v1, 28672, v1')
    a('v_and_b32 v2, 3, v0')
    a('v_lshl_add_u32 v1, v2, 4, v1')
    a('s_lshl_b32 s17, s2, 7')
    a('v_add_u32 v1, s17, v1')
    a('s_lshl_b32 s17, s2, 13')
    a('v_lshl_add_u32 v2, v0, 4, s17')
    a('v_add_u32 v7, 4096, v2')
    a('s_waitcnt lgkmcnt(0)')
    a.stamp()
    a(f's_add_u32 s22, s3, {MOD}');        a('s_load_dwordx2 s[8:9], s[4:5], s22')
    a(f's_add_u32 s22, s3, {MOD+7*1792}'); a('s_load_dwordx2 s[10:11], s[4:5], s22')
    a(f's_add_u32 s22, s3, {MOD+3584}');   a('s_load_dwordx2 s[12:13], s[4:5], s22')
    a(f's_add_u32 s22, s3, {KSC}');        a('s_load_dwordx2 s[14:15], s[4:5], s22')
    a('s_load_dword s16, s[6:7], s16')
    a(f's_add_u32 s18, s4, {XNT}'); a('s_addc_u32 s19, s5, 0')
    a(f's_add_u32 s20, s4, {KP}'); a('s_addc_u32 s21, s5, 0')
    a('global_load_dwordx4 v[8:11], v1, s[18:19]')
    a('global_load_dwordx4 v[12:15], v1, s[18:19] offset:64')
    a('global_load_dwordx4 v[16:19], v2, s[20:21]')
    a('global_load_dwordx4 v[20:23], v7, s[20:21]')
    for r in range(4): a(f'v_mov_b32 v{24+r}, 0')
    a('v_and_b32 v3, 31, v0')
    a('v_lshlrev_b32 v3, 4, v3')
    a('v_lshrrev_b32 v4, 5, v0')
    a('v_mul_u32_u24 v4, 4608, v4')
    a('v_add_u32 v3, v3, v4')
    a(f'v_add_u32 v3, {KB}, v3')
    a('v_and_b32 v4, 7, v0')
    a('v_mul_u32_u24 v5, 4352, v4')
    a('v_and_b32 v6, 3, v4')
    a('v_lshl_add_u32 v5, v6, 6, v5')
    a('v_lshrrev_b32 v6, 2, v4')
    a('v_lshl_add_u32 v5, v6, 5, v5')
    a('v_bfe_u32 v6, v0, 3, 1')
    a(f'v_mul_u32_u24 v6, {TCS}, v6')
    a('v_add_u32 v5, v5, v6')
    a('v_cmp_gt_u32 vcc, 64, v0')
    a('s_and_saveexec_b64 s[24:25], vcc')
    a('ds_write_b128 v3, v[24:27]')
    a('v_cmp_gt_u32 vcc, 16, v0')
    a('s_and_b64 exec, exec, vcc')
    a('ds_write_b128 v5, v[24:27] offset:4096')
    a('ds_write_b128 v5, v[24:27] offset:4112')
    a('s_mov_b64 exec, s[24:25]')
    a('v_lshlrev_b32 v3, 4, v0')
    a('v_sub_u32 v4, 4080, v3')
    a(f'v_add_u32 v5, {KB+512}, v3')
    a('v_and_b32 v100, 15, v0')
    a('v_bfe_u32 v101, v0, 4, 2')
    a('v_lshrrev_b32 v102, 6, v0')
    a('v_readfirstlane_b32 s26, v102')
    a('s_lshr_b32 s27, s26, 1')
    a('s_and_b32 s28, s26, 1')
    a('v_and_b32 v103, 7, v100')
    a('v_sub_u32 v103, 7, v103')
    a('v_mul_u32_u24 v104, 4352, v103')
    a('v_and_b32 v105, 3, v103')
    a('v_lshl_add_u32 v104, v105, 6, v104')
    a('v_lshrrev_b32 v105, 2, v103')
    a('v_lshl_add_u32 v104, v105, 5, v104')
    a('v_and_b32 v105, 1, v101')
    a('v_lshrrev_b32 v106, 1, v101')
    a('v_lshlrev_b32 v106, 1, v106')
    a('v_sub_u32 v105, v105, v106')
    a('v_lshrrev_b32 v106, 3, v100')
    a('v_sub_u32 v106, v105, v106')
    a('v_add_u32 v106, 19, v106')
    a('v_lshl_add_u32 v104, v106, 4, v104')
    a(f's_mul_i32 s29, s27, {TCS}')
    a('s_lshl_b32 s30, s28, 8')
    a('s_sub_u32 s29, s29, s30')
    a('v_add_u32 v176, s29, v104')
    a('v_lshlrev_b32 v106, 5, v100')
    a('v_lshl_add_u32 v105, v105, 4, v106')
    a('s_mul_i32 s29, s27, 4608')
    a(f's_add_u32 s29, s29, {KB+512-192}')
    a('s_sub_u32 s29, s29, s30')
    a('v_add_u32 v177, s29, v105')
    a('v_lshlrev_b32 v106, 6, v100')
    a('v_lshl_add_u32 v106, v101, 4, v106')
    a(f's_mul_i32 s29, s27, {TCS}')
    a('s_lshl_b32 s30, s28, 13')
    a('s_add_u32 s29, s29, s30'); a(f's_add_u32 s29, s29, {RED}')
    a('v_add_u32 v178, s29, v106')
    WT = KB + 9216
    a('v_lshlrev_b32 v107, 2, v102')
    a(f'v_add_u32 v107, {WT}, v107')
    a.stamp()
    XN = 188; SL = 196
    for c in range(2):
        a(f's_waitcnt vmcnt({3-c})')
        src = 8 + 4*c
        for k in range(4): unpack2(a, 44+2*k, 45+2*k, src + k)
        for k in range(4): a(f'v_cvt_pk_f16_f32 v{52+k}, v{51-2*k}, v{50-2*k}')
        for k in range(4): a(f'v_mov_b32 v{XN+4*c+k}, v{src+k}')
        a(f'ds_write_b128 v4, v[52:55] offset:{TCS*c}')
    a('s_waitcnt vmcnt(0)')
    a('ds_write_b128 v5, v[16:19]')
    a('ds_write_b128 v5, v[20:23] offset:4608')
    for c in range(2):
        for k in range(4):
            a(f'v_cvt_f32_f16 v{SL+8*c+2*k}, v{16+4*c+k}')
            a(f'v_cvt_f32_f16_sdwa v{SL+8*c+2*k+1}, v{16+4*c+k} src0_sel:WORD_1')
    for j in range(1, 8):
        for c in range(2): a(f'v_add_f32 v{SL+8*c+j}, v{SL+8*c+j}, v{SL+8*c+j-1}')
    for c in range(2): a(f'v_mov_b32 v{44+c}, v{SL+8*c+7}')
    for sh in (1, 2, 4, 8):
        for c in range(2): a(f'v_add_f32_dpp v{44+c}, v{44+c}, v{44+c} row_shr:{sh} row_mask:0xf bank_mask:0xf bound_ctrl:0')
    for c in range(2): a(f'v_add_f32_dpp v{44+c}, v{44+c}, v{44+c} row_bcast:15 row_mask:0xa bank_mask:0xf')
    for c in range(2): a(f'v_add_f32_dpp v{44+c}, v{44+c}, v{44+c} row_bcast:31 row_mask:0xc bank_mask:0xf')
    for c in range(2): a(f'v_sub_f32 v{212+c}, v{44+c}, v{SL+8*c+7}')
    a('v_and_b32 v46, 63, v0')
    a('v_cmp_eq_u32 vcc, 63, v46')
    a('s_and_saveexec_b64 s[24:25], vcc')
    a('ds_write_b32 v107, v44')
    a('ds_write_b32 v107, v45 offset:16')
    a('s_mov_b64 exec, s[24:25]')
    a('s_waitcnt lgkmcnt(0)')
    a.stamp()
    a('s_barrier')
    for c in range(2):
        a(f'ds_read_b128 v[{44+8*c}:{47+8*c}], v3 offset:{TCS*c}')
        a(f'ds_read_b128 v[{48+8*c}:{51+8*c}], v3 offset:{TCS*c+16}')
    a(f'v_mov_b32 v107, {WT}')
    a('ds_read_b128 v[216:219], v107')
    a('ds_read_b128 v[220:223], v107 offset:16')
    for c in range(2):
        D = 44 + 8*c
        a('s_waitcnt lgkmcnt(4)' if c == 0 else 's_waitcnt lgkmcnt(7)')
        P, O, O2 = 60 + 18*c, 66 + 18*c, 72 + 18*c
        for i in range(6): a(f'v_mov_b32 v{P+i}, v{D+1+i}')
        for i in range(6): a(f'v_alignbit_b32 v{O+i}, v{D+i+1}, v{D+i}, 16')
        for i in range(6): a(f'v_alignbit_b32 v{O2+i}, v{D+i+2}, v{D+i+1}, 16')
        src = {1: O, 2: P, 3: O2, 4: D+2, 5: O+2, 6: P+2, 7: O2+2}
        for sg in range(1, 8):
            a(f'ds_write_b128 v3, v[{src[sg]}:{src[sg]+3}] offset:{TCS*c + tbase(sg)}')
    for wv in range(3):
        a(f's_cmp_gt_u32 s26, {wv}')
        a('s_cselect_b32 s29, 1.0, 0')
        for c in range(2): a(f'v_fma_f32 v{212+c}, v{216+4*c+wv}, s29, v{212+c}')
    a('v_lshlrev_b32 v184, 5, v0')
    a('s_lshl_b32 s29, s2, 13')
    a('v_lshl_add_u32 v186, v0, 4, s29')
    a('v_add_u32 v187, 4096, v186')
    from gen4 import Cap
    fc = Cap()
    for c in range(2):
        b = 224 + 8*c
        fc(f'v_mov_b32 v{b}, s{10+c}')
        fc(f'v_mov_b32 v{b+2}, s{8+c}')
        fc(f'v_mov_b32 v46, s{14+c}')
        fc(f'v_mul_f32 v46, s{12+c}, v46')
        fc(f'v_mul_f32 v{b+4}, v46, v{b}'); fc(f'v_mov_b32 v{b+5}, v{b+4}')
        fc(f'v_mul_f32 v{b+6}, v46, v{b+2}')
        fc('v_mov_b32 v46, s16')
        fc('v_lshlrev_b32 v46, 16, v46' if c == 0 else 'v_and_b32 v46, 0xffff0000, v46')
        fc(f'v_mul_f32 v{b+7}, s{12+c}, v46')
        E = 240 + 8*c
        for k in range(4): unpack2(fc, E+2*k, E+2*k+1, XN + 4*c + k)
        for j in range(8): fc(f'v_fma_f32 v{E+j}, v{E+j}, v{b}, v{b+2}')
        for k in range(4): fc(f'v_cvt_pk_bf16_f32 v{40+k}, v{E+2*k}, v{E+2*k+1}')
        for k in range(4): unpack2(fc, E+2*k, E+2*k+1, 40 + k)
        fc(f'v_mul_f32 v46, v{b+6}, v{212+c}')
        for j in range(8): fc(f'v_fma_f32 v{E+j}, v{E+j}, v{b+7}, v46')
        for j in range(8): fc(f'v_fma_f32 v{E+j}, v{SL+8*c+j}, v{b+6}, v{E+j}')
    ACC = 8
    a('s_waitcnt lgkmcnt(0)')
    a.stamp()
    a('s_barrier')
    a.stamp()
    SETS = (48, 112)
    def reads(ci, base):
        for p in range(8):
            a(f'ds_read_b128 v[{base+4*p}:{base+4*p+3}], v176 offset:{512*(7-p)+32*(6-2*ci)}')
            a(f'ds_read_b128 v[{base+32+4*p}:{base+35+4*p}], v177 offset:{512*p+32*(6-2*ci)}')
    order = sorted([(p, q) for p in range(8) for q in range(8) if p + q <= 7], key=lambda t: (max(t), t))
    C0ALT = int(os.environ.get('C0ALT', '0'))
    order2 = [(p, q) for p in range(8) for q in range(8) if p + q <= 7]
    def spread(lst):
        out = []; rem = list(lst)
        while rem:
            pick = next((t for t in rem if all(sum(t) != sum(o) for o in out[-2:])), rem[0])
            out.append(pick); rem.remove(pick)
        return out
    o0 = []
    for mxv in range(8): o0 += spread([t for t in order if max(t) == mxv])
    order = o0
    order2 = spread(order2)
    reads(0, SETS[0])
    for r in range(32): a(f'v_mov_b32 v{ACC+r}, 0')
    for ci in range(4):
        base = SETS[ci & 1]
        lastmx = -1
        nxt = 0
        for idx, (p, q) in enumerate(order if ci == 0 else order2):
            mx = max(p, q)
            if C0ALT:
                if idx == 0: a('s_waitcnt lgkmcnt(0)')
            elif ci == 0 and mx != lastmx:
                a(f's_waitcnt lgkmcnt({14 - 2*mx})'); lastmx = mx
            elif ci > 0 and idx == 0:
                a('s_waitcnt lgkmcnt(0)')
            t = ACC + 4*(p + q)
            a(f'v_mfma_f32_16x16x32_f16 v[{t}:{t+3}], v[{base+4*p}:{base+4*p+3}], v[{base+32+4*q}:{base+35+4*q}], v[{t}:{t+3}]')
            if ci >= 1:
                for _ in range(2):
                    if fc.l: a(fc.l.pop(0))
            if ci < 3 and (ci > 0 or mx == 7 or C0ALT) and nxt < 8:
                nb = SETS[(ci + 1) & 1]; pp = nxt; nxt += 1
                a(f'ds_read_b128 v[{nb+4*pp}:{nb+4*pp+3}], v176 offset:{512*(7-pp)+32*(6-2*(ci+1))}')
                a(f'ds_read_b128 v[{nb+32+4*pp}:{nb+35+4*pp}], v177 offset:{512*pp+32*(6-2*(ci+1))}')
        while ci < 3 and nxt < 8:
            nb = SETS[(ci + 1) & 1]; pp = nxt; nxt += 1
            a(f'ds_read_b128 v[{nb+4*pp}:{nb+4*pp+3}], v176 offset:{512*(7-pp)+32*(6-2*(ci+1))}')
            a(f'ds_read_b128 v[{nb+32+4*pp}:{nb+35+4*pp}], v177 offset:{512*pp+32*(6-2*(ci+1))}')
        if ci < 3 and os.environ.get('CLS'): a.stamp()
    a.stamp()
    a('s_barrier')
    for t in range(8): a(f'ds_write_b128 v178, v[{ACC+4*t}:{ACC+4*t+3}] offset:{1024*t}')
    a(f's_add_u32 s20, s4, {GT}'); a('s_addc_u32 s21, s5, 0')
    a('s_waitcnt lgkmcnt(0)')
    a('s_barrier')
    a.stamp()
    for c in range(2):
        for hh in range(2):
            for k in range(2):
                r = 112 + 16*c + 8*hh + 4*k
                a(f'ds_read_b128 v[{r}:{r+3}], v184 offset:{TCS*c + RED + 8192*hh + 16*k}')
    for c in range(2):
        b = 224 + 8*c; r = 112 + 16*c; E = 240 + 8*c
        a(f's_waitcnt lgkmcnt({4-4*c})')
        for k in range(4): a(f'v_pk_add_f32 {pr(r+2*k)}, {pr(r+2*k)}, {pr(r+8+2*k)}')
        for k in range(4): a(f'v_pk_fma_f32 {pr(r+2*k)}, {pr(r+2*k)}, {pr(b+4)}, {pr(E+2*k)}')
        for k in range(4): a(f'v_cvt_pk_bf16_f32 v{40+4*c+k}, v{r+2*k}, v{r+2*k+1}')
        a(f'global_store_dwordx4 v{186+c}, v[{40+4*c}:{43+4*c}], s[20:21]')
    a('s_waitcnt vmcnt(0)') if asmlib.STAMPS else None
    a.stamp_dump(1, 4, vt=(100, 101))
    a('s_endpgm')
    a.label('K2_PACK')
    a.stamp(real=True); a.stamp()
    a('s_load_dwordx8 s[12:19], s[0:1], 80')
    a('s_load_dwordx2 s[20:21], s[0:1], 144')
    a('s_sub_u32 s3, s2, 224')
    a('s_waitcnt lgkmcnt(0)')
    a('s_mov_b32 s6, 896'); a('s_mov_b32 s10, 14336'); a('s_mov_b32 s11, -1')
    a('s_cmp_lt_u32 s3, 14')
    a('s_cbranch_scc0 K2_P34')
    a('s_cmp_lt_u32 s3, 7')
    a('s_cselect_b32 s4, s12, s14'); a('s_cselect_b32 s5, s13, s15')
    a(f's_mov_b32 s22, {W2P}')
    a(f's_cselect_b32 s22, {W1P}, s22')
    a(f's_cselect_b32 s11, {CS1}, -1')
    a('s_cselect_b32 s23, 0, 7')
    a('s_sub_u32 s23, s3, s23')
    a('s_mov_b32 s24, 0')
    a('s_branch K2_PGO')
    a.label('K2_P34')
    a('s_cmp_lt_u32 s3, 42')
    a('s_cbranch_scc0 K2_P4')
    a('s_mov_b32 s4, s16'); a('s_mov_b32 s5, s17'); a('s_mov_b32 s6, 3584')
    a(f's_mov_b32 s22, {W3P}'); a(f's_mov_b32 s11, {CS3}')
    a('s_sub_u32 s23, s3, 14'); a('s_mov_b32 s24, 0')
    a('s_branch K2_PGO')
    a.label('K2_P4')
    a('s_mov_b32 s4, s18'); a('s_mov_b32 s5, s19')
    a(f's_mov_b32 s22, {W4P}'); a('s_mov_b32 s10, 57344')
    a('s_sub_u32 s23, s3, 42')
    a('s_mul_i32 s24, s23, 37'); a('s_lshr_b32 s24, s24, 8')
    a('s_mul_i32 s25, s24, 7'); a('s_sub_u32 s23, s23, s25')
    a.label('K2_PGO')
    a(f's_mul_i32 s25, s24, {448*896}')
    a('s_lshl_b32 s26, s23, 7')
    a('s_add_u32 s25, s25, s26')
    a('s_add_u32 s4, s4, s25'); a('s_addc_u32 s5, s5, 0')
    a('s_lshl_b32 s25, s23, 2'); a('s_mul_i32 s25, s25, s10')
    a('s_mul_i32 s26, s24, 14336'); a('s_add_u32 s25, s25, s26'); a('s_add_u32 s25, s25, s22')
    a('s_add_u32 s8, s20, s25'); a('s_addc_u32 s9, s21, 0')
    a('v_lshrrev_b32 v1, 3, v0')
    a('v_and_b32 v2, 7, v0')
    a('v_mul_lo_u32 v3, v1, s6')
    a('v_lshl_add_u32 v3, v2, 4, v3')
    a('s_lshl_b32 s25, s6, 5')
    for i in range(14):
        if i: a('v_add_u32 v3, s25, v3')
        a(f'global_load_dwordx4 v[{16+4*i}:{19+4*i}], v3, s[4:5]')
    a('v_bfe_u32 v4, v1, 1, 1')
    a('v_bfe_u32 v5, v1, 3, 1')
    a('v_lshlrev_b32 v4, 2, v4')
    a('v_lshl_or_b32 v4, v5, 1, v4')
    a('v_xor_b32 v4, v4, v2')
    a('v_lshlrev_b32 v4, 4, v4')
    a('v_lshl_add_u32 v4, v1, 7, v4')
    a('v_mov_b32 v76, 0x05040100')
    a('v_mov_b32 v77, 0x07060302')
    a('v_cmp_eq_u32 vcc, 1, v5')
    a('v_cndmask_b32 v78, v76, v77, vcc')
    a('v_cndmask_b32 v79, v77, v76, vcc')
    a('v_and_b32 v5, 15, v0'); a('v_bfe_u32 v6, v0, 4, 2'); a('v_lshrrev_b32 v7, 6, v0')
    a('v_lshrrev_b32 v8, 2, v5')
    a('v_lshl_add_u32 v8, v6, 3, v8')
    a('v_and_b32 v9, 3, v5')
    a('v_lshrrev_b32 v10, 1, v7')
    a('v_lshl_add_u32 v10, v10, 2, v9')
    a('v_and_b32 v11, 1, v7')
    a('v_and_b32 v12, 1, v9')
    a('v_lshl_add_u32 v12, v7, 1, v12')
    a('v_lshrrev_b32 v13, 1, v9')
    a('s_cmp_eq_u32 s11, -1')
    a('s_cselect_b64 s[26:27], -1, 0')
    a('v_cndmask_b32 v10, v10, v12, s[26:27]')
    a('v_cndmask_b32 v11, v11, v13, s[26:27]')
    a('v_bfe_u32 v12, v8, 1, 1'); a('v_bfe_u32 v13, v8, 3, 1')
    a('v_lshlrev_b32 v12, 2, v12')
    a('v_lshl_or_b32 v12, v13, 1, v12')
    a('v_xor_b32 v10, v10, v12')
    a('v_xor_b32 v11, v11, v13')
    a('v_lshlrev_b32 v9, 7, v8')
    a('v_lshl_add_u32 v9, v10, 4, v9')
    a('v_lshl_add_u32 v9, v11, 3, v9')
    a('v_mul_lo_u32 v10, v7, s10')
    a('v_and_b32 v11, 63, v0')
    a('v_lshl_add_u32 v10, v11, 4, v10')
    for r in range(4): a(f'v_mov_b32 v{12+r}, 0x3f803f80')
    for r in range(4): a(f'v_mov_b32 v{72+r}, 0')
    for i in range(14):
        a(f's_waitcnt vmcnt({13-i})')
        b = 16 + 4*i; t = 80 + 4*(i & 1)
        a(f'v_perm_b32 v{t}, v{b+1}, v{b}, v78')
        a(f'v_perm_b32 v{t+1}, v{b+3}, v{b+2}, v78')
        a(f'v_perm_b32 v{t+2}, v{b+1}, v{b}, v79')
        a(f'v_perm_b32 v{t+3}, v{b+3}, v{b+2}, v79')
        a(f'ds_write_b128 v4, v[{t}:{t+3}] offset:{4096*i}')
    a('s_waitcnt lgkmcnt(0)')
    a.stamp()
    a('s_barrier')
    for s in range(14):
        a(f'ds_read_b64_tr_b16 v[{16+4*s}:{17+4*s}], v9 offset:{4096*s}')
        a(f'ds_read_b64_tr_b16 v[{18+4*s}:{19+4*s}], v9 offset:{4096*s+512}')
        if s >= 6:
            s1 = s - 6
            a('s_waitcnt lgkmcnt(12)')
            a(f'global_store_dwordx4 v10, v[{16+4*s1}:{19+4*s1}], s[8:9] offset:{1024*(s1&3)}')
            a(f'v_mfma_f32_16x16x32_bf16 v[72:75], v[12:15], v[{16+4*s1}:{19+4*s1}], v[72:75]')
            if (s1 & 3) == 3: a('v_add_u32 v10, 4096, v10')
    for s1 in range(8, 14):
        a(f's_waitcnt lgkmcnt({2*(13-s1)})')
        a(f'global_store_dwordx4 v10, v[{16+4*s1}:{19+4*s1}], s[8:9] offset:{1024*(s1&3)}')
        a(f'v_mfma_f32_16x16x32_bf16 v[72:75], v[12:15], v[{16+4*s1}:{19+4*s1}], v[72:75]')
        if (s1 & 3) == 3: a('v_add_u32 v10, 4096, v10')
    if asmlib.STAMPS:
        a('s_waitcnt vmcnt(0)'); a.stamp(); a.stamp(); a.stamp(); a.stamp(); a.stamp(); a.stamp()
        a.stamp_dump(1, 20, vt=(100, 101))
    a('s_cmp_eq_u32 s11, -1')
    a('s_cbranch_scc1 K2_END')
    a('v_cmp_gt_u32 vcc, 16, v11')
    a('s_and_saveexec_b64 s[26:27], vcc')
    a('s_lshl_b32 s25, s23, 8')
    a('s_add_u32 s25, s25, s11')
    a('v_lshrrev_b32 v6, 1, v7')
    a('v_lshl_add_u32 v5, v6, 4, v5')
    a('v_and_b32 v6, 1, v7')
    a('v_lshl_add_u32 v5, v5, 1, v6')
    a('v_lshl_add_u32 v5, v5, 2, s25')
    a('global_store_dword v5, v72, s[20:21]')
    a.label('K2_END')
    a('s_endpgm')
    kernel('conv_kernel', (294, 1, 1), (256, 1, 1), 78848 + 256, 256, 40, a, keepv=True)

def gen_all(G):
    gen_k2(G)
    try:
        import gen3
        gen3.gen_all(G)
    except ImportError:
        pass
```
